```python
import torch

def _softmax(x, axis=-1):
    return torch.softmax(x, dim=axis)
def _gelu(x):
    return torch.nn.functional.gelu(x, approximate="tanh")
def _silu(x):
    return torch.nn.functional.silu(x)
def _sigmoid(x):
    return torch.sigmoid(x)
def _layernorm(x, axis=-1, eps=1e-5):
    m = x.mean(dim=axis, keepdim=True)
    v = x.var(dim=axis, keepdim=True, unbiased=False)
    return (x - m) / torch.sqrt(v + eps)
def _scatter_add(tgt, idx, src, axis=0):
    return tgt.clone().index_add_(axis, idx, src)
def _segment_sum(src, seg, n):
    out = torch.zeros((n,) + src.shape[1:], dtype=src.dtype)
    return out.index_add_(0, seg, src)
def _pad(x, pw):
    flat = tuple(v for pair in reversed(pw) for v in pair)
    return torch.nn.functional.pad(x, flat)

kernel_name = 'standalone__mha_softmax__near_ridge'

def setup_inputs():

    _w = (lambda a: (lambda t: t.to(torch.bfloat16) if t.is_floating_point() else t)(torch.as_tensor(a)))
    B, H, Sq, Sk, D = 16, 32, 288, 1024, 128
    return {
        "q": _w((lambda *s: torch.randn(*s, dtype=torch.bfloat16) * 0.8)(B, H, Sq, D)),
        "k": _w((lambda *s: torch.randn(*s, dtype=torch.bfloat16) * 0.8)(B, H, Sk, D)),
        "v": _w((lambda *s: torch.randn(*s, dtype=torch.bfloat16) * 0.05)(B, H, Sk, D)),
    }

def reference(q, k, v):
    scale = q.shape[-1] ** -0.5
    scores = torch.einsum("bhqd,bhkd->bhqk", q, k) * scale
    p = _softmax(scores, axis=-1)
    return torch.einsum("bhqk,bhkd->bhqd", p, v)
```

```python
import re

def expand(op):
    op = op.strip()
    op = op.lstrip('-')
    if op.startswith('abs(') or op.startswith('|'):
        op = op.replace('abs(', '').replace(')', '').replace('|', '')
    m = re.fullmatch(r'([vas])\[(\d+):(\d+)\]', op)
    if m:
        return [m.group(1) + str(i) for i in range(int(m.group(2)), int(m.group(3)) + 1)]
    m = re.fullmatch(r'([vas])(\d+)', op)
    if m:
        return [op]
    if op in ('vcc', 'exec', 'm0', 'scc'):
        return [op]
    if op in ('vcc_lo', 'vcc_hi'):
        return ['vcc']
    return []

TRANS = ('v_exp_f32', 'v_log_f32', 'v_rcp_f32', 'v_rsq_f32', 'v_sqrt_f32')

class Ins:
    __slots__ = ('text', 'op', 'kind', 'rd', 'wr', 'srcc', 'srcab', 'cost', 'note')
    def __init__(self, text):
        self.text = text
        self.note = None
        t = text.split(';')[0].strip()
        self.srcc = []; self.srcab = []
        if t.endswith(':') or t.startswith('.') or t == '':
            self.op = 'label'; self.kind = 'label'; self.rd = []; self.wr = []; self.cost = 0
            return
        parts = t.split(None, 1)
        op = parts[0]
        base = re.sub(r'_(e32|e64|sdwa|dpp)$', '', op)
        self.op = base
        rest = parts[1] if len(parts) > 1 else ''
        ops = [o.strip() for o in re.split(r',(?![^\[]*\])', rest)] if rest else []
        mods = ''
        if ops:
            lp = ops[-1].split(None, 1)
            ops[-1] = lp[0]
            mods = lp[1] if len(lp) > 1 else ''
        E = [expand(o) for o in ops]
        flat = lambda ls: [r for l in ls for r in l]
        rd = []; wr = []
        self.cost = 4
        if base.startswith('v_mfma'):
            self.kind = 'mfma'; wr = E[0]; rd = flat(E[1:]); self.srcc = E[3]; self.srcab = E[1] + E[2]; self.cost = 8
        elif base.startswith('v_cmp'):
            self.kind = 'valu'; wr = E[0]; rd = flat(E[1:])
        elif base.startswith('v_permlane32_swap') or base.startswith('v_permlane16_swap'):
            self.kind = 'valu'; wr = flat(E); rd = flat(E)
        elif base.startswith('v_fmac'):
            self.kind = 'valu'; wr = E[0]; rd = flat(E)
        elif base.startswith('v_'):
            self.kind = 'trans' if base in TRANS else 'valu'
            if self.kind == 'trans': self.cost = 8
            if base == 'v_nop':
                pass
            else:
                wr = E[0]; rd = flat(E[1:])
                if base in ('v_add_co_u32', 'v_addc_co_u32'):
                    wr = E[0] + E[1]; rd = flat(E[2:])
        elif base.startswith('ds_read'):
            self.kind = 'dsr'; wr = E[0]; rd = flat(E[1:])
        elif base.startswith('ds_write'):
            self.kind = 'dsw'; rd = flat(E)
        elif base.startswith('buffer_load'):
            if re.search(r'\blds\b', mods):
                self.kind = 'dma'; rd = flat(E) + ['m0']
            else:
                self.kind = 'vld'; wr = E[0]; rd = flat(E[1:])
        elif base.startswith('buffer_store'):
            self.kind = 'vst'; rd = flat(E)
        elif base == 's_waitcnt':
            self.kind = 'wait'
        elif base == 's_nop':
            self.kind = 'nop'; self.cost = 4 * (int(ops[0], 0) + 1)
        elif base == 's_barrier':
            self.kind = 'barrier'
        elif base.startswith('s_cbranch') or base == 's_branch' or base == 's_endpgm':
            self.kind = 'branch'
            if 'vcc' in base: rd = ['vcc']
            if 'scc' in base: rd = ['scc']
        elif base.startswith('s_cmp'):
            self.kind = 'salu'; rd = flat(E); wr = ['scc']
        elif base.startswith('s_load') or base.startswith('s_memtime') or base.startswith('s_memrealtime'):
            self.kind = 'smem'; wr = E[0]; rd = flat(E[1:])
        elif base in ('s_setprio', 's_sleep'):
            self.kind = 'salu'
        elif base.startswith('s_'):
            self.kind = 'salu'; wr = E[0]; rd = flat(E[1:])
        else:
            raise ValueError('unknown instr ' + text)
        self.rd = rd; self.wr = wr
    def states(self):
        if self.kind == 'label': return 0
        if self.kind == 'nop': return self.cost // 4
        return 1

def need_states(p, c):
    n = 0
    pw = set(p.wr);
    isvalu = lambda x: x.kind in ('valu', 'trans')
    if p.kind == 'mfma':
        if c.kind == 'mfma':
            if pw & set(c.srcab): n = max(n, 12)
            if pw & set(c.srcc) and p.wr != c.srcc: n = max(n, 10)
        elif isvalu(c):
            if pw & (set(c.rd) | set(c.wr)): n = max(n, 12)
            if set(p.srcc) & set(c.wr): n = max(n, 7)
        elif c.kind in ('dsr', 'dsw', 'vld', 'vst', 'dma'):
            if pw & (set(c.rd) | set(c.wr)): n = max(n, 12)
    if isvalu(p):
        if c.kind == 'mfma' and pw & set(c.rd): n = max(n, 2)
        if p.kind == 'trans' and c.kind == 'valu' and pw & set(c.rd): n = max(n, 1)
        if c.op.startswith('v_permlane') and pw & set(c.rd): n = max(n, 2)
        if c.op in ('v_readfirstlane_b32', 'v_readlane_b32') and pw & set(c.rd): n = max(n, 1)
        sw = {r for r in pw if r[0] == 's' or r == 'vcc'}
        if sw:
            if isvalu(c) and sw & set(c.rd): n = max(n, 2)
            if c.kind in ('vld', 'vst', 'dma') and sw & set(c.rd): n = max(n, 5)
    if p.kind == 'salu' and 'm0' in pw and c.kind == 'dma': n = max(n, 1)
    if p.kind == 'vst' and ('x4' in p.op or 'x3' in p.op):
        if set(p.rd) & set(c.wr): n = max(n, 2)
    return n

def deficit(hist, c):
    d = 0; dist = 0
    for p in reversed(hist):
        if dist >= 12: break
        n = need_states(p, c)
        if n > dist: d = max(d, n - dist)
        dist += p.states()
    return d

def check_hazards(seq, name=''):
    bad = 0
    for i, c in enumerate(seq):
        if c.kind == 'label': continue
        d = deficit(seq[max(0, i - 16):i], c)
        if d:
            bad += 1
            print('HAZARD %s: short %d states before: %s' % (name, d, c.text))
    return bad

class Emitter:
    def __init__(self):
        self.seq = []
        self.ldsq = []
        self.stamp = 0
        self.merge = 3
    def raw(self, ins):
        self.seq.append(ins)
    def lgkm_need(self, ins):
        regs = set(ins.rd) | set(ins.wr)
        last = -1
        for i, (d, st) in enumerate(self.ldsq):
            if set(d.wr) & regs: last = i
        return last
    def emit(self, text, auto=True):
        ins = text if isinstance(text, Ins) else Ins(text)
        if ins.kind == 'wait':
            m = re.search(r'lgkmcnt\((\d+)\)', ins.text)
            if m:
                n = int(m.group(1))
                self.ldsq = self.ldsq[len(self.ldsq) - n:] if n else []
                if n > len(self.ldsq): pass
            self.seq.append(ins); return ins
        if auto and ins.kind != 'label':
            last = self.lgkm_need(ins)
            if last >= 0:
                while last + 1 < len(self.ldsq) and self.ldsq[last + 1][1] <= self.stamp - self.merge:
                    last += 1
                n = len(self.ldsq) - 1 - last
                n = min(n, 15)
                self.seq.append(Ins('s_waitcnt lgkmcnt(%d)' % n))
                self.ldsq = self.ldsq[len(self.ldsq) - n:] if n else []
            d = deficit(self.seq[-16:], ins)
            if d:
                self.seq.append(Ins('s_nop %d' % (d - 1)))
        self.seq.append(ins)
        if ins.kind in ('dsr', 'dsw'):
            self.ldsq.append((ins, self.stamp))
        if ins.kind == 'mfma': self.stamp += 1
        return ins
    def text(self, seq=None):
        out = []
        for i in (self.seq if seq is None else seq):
            out.append(i.text if i.kind == 'label' else '    ' + i.text)
        return '\n'.join(out)
```

```python
import sys, math, struct
from asmlib import *

OPT = dict(budget=20, nodma=0, nocompute=0, stamp=0, T=16.0, e64=0, dmacost=8, ntq=1, ntst=0, align=0, nosm=0, nomax=0)
for a in sys.argv[1:]:
    k, v = a.split('=')
    OPT[k] = float(v) if '.' in v else int(v)

KN = "standalone__mha_softmax__near_ridge_kernel"
def f2u(x): return struct.unpack('<I', struct.pack('<f', x))[0]

OA, OB = 0, 64
SBUF = [128, 144, 160]
NEGM = {'A': 176, 'B': 192, 'C': 208}
vL = {'A': (224, 225), 'B': (226, 227), 'C': (228, 229)}
vT0, vT1 = 230, 231
vKA0, vKA1, vVA = 232, 233, 234
vKD, vVD = 235, 236
vQO, vQC = 237, 238
vTMP = 240
vLANE = 239
aOC, aQ, aK, aV = 0, {'A': 64, 'B': 96, 'C': 128}, 160, 192

sW = 3
sQ, sK, sV, sO = 12, 16, 20, 24
sSL = [44, 45, 46, 47, 48]
sVG = 30
sT0, sT1, sT2 = 34, 35, 28
sIT, sHO, sTHR, sC, sWC = 36, 37, 38, 39, 42
sHEAD = 43

def vr(b, n): return 'v[%d:%d]' % (b, b + n - 1)
def ar(b, n): return 'a[%d:%d]' % (b, b + n - 1)
def srd(b): return 's[%d:%d]' % (b, b + 3)
def oacc(t, dt):
    if t == 'A': return vr(OA + 16 * dt, 16)
    if t == 'B': return vr(OB + 16 * dt, 16)
    return ar(aOC + 16 * dt, 16)

UT = ['A', 'B', 'C', 'A', 'B', 'A', 'B', 'A', 'B']
USB = [0, 0, 0, 1, 1, 2, 2, 3, 3]

E = Emitter()
e = E.emit
rare_blocks = []

def qk_block(u, first):
    t = UT[u]; s = SBUF[u % 3]
    out = []
    for kk in range(8):
        c = vr(s, 16) if kk else ('0' if (first and u < 3) else vr(NEGM[t], 16))
        out.append('v_mfma_f32_32x32x16_bf16 %s, %s, %s, %s' % (vr(s, 16), ar(aK + 4 * kk, 4), ar(aQ[t] + 4 * kk, 4), c))
    return out

def pv_block(u, first):
    t = UT[u]; s = SBUF[u % 3]
    out = []
    for ks in range(2):
        for dt in range(4):
            c = '0' if (first and u < 3 and ks == 0) else oacc(t, dt)
            out.append('v_mfma_f32_32x32x16_bf16 %s, %s, %s, %s' % (oacc(t, dt), ar(aV + 4 * (ks * 4 + dt), 4), vr(s + 8 * ks, 4), c))
    return out

def kread(kk):
    return 'ds_read_b128 %s, v%d offset:%d' % (ar(aK + 4 * kk, 4), vKA1 if kk & 1 else vKA0, (kk >> 1) * 256)
def vread(f, ii):
    ks, dt = f >> 2, f & 3
    return 'ds_read_b64_tr_b16 %s, v%d offset:%d' % (ar(aV + 4 * f + 2 * ii, 2), vVA, (2 * ks + ii) * 8192 + dt * 256)

def max_ops(s):
    return ['v_max3_f32 v%d, v%d, v%d, v%d' % (vT0, s, s + 1, s + 2),
            'v_max3_f32 v%d, v%d, v%d, v%d' % (vT1, s + 3, s + 4, s + 5),
            'v_max3_f32 v%d, v%d, v%d, v%d' % (vT0, vT0, s + 6, s + 7),
            'v_max3_f32 v%d, v%d, v%d, v%d' % (vT1, vT1, s + 8, s + 9),
            'v_max3_f32 v%d, v%d, v%d, v%d' % (vT0, vT0, s + 10, s + 11),
            'v_max3_f32 v%d, v%d, v%d, v%d' % (vT1, vT1, s + 12, s + 13),
            'v_max3_f32 v%d, v%d, v%d, v%d' % (vT0, vT0, s + 14, s + 15),
            'v_max_f32 v%d, v%d, v%d' % (vT0, vT0, vT1)]

def softmax_stream(u, init, tagname):
    t = UT[u]; s = SBUF[u % 3]; l0, l1 = vL[t]
    it = []
    if OPT['nosm']:
        return [('v_cvt_pk_bf16_f32 v%d, v%d, v%d' % (s, s, s + 1), 'h0'), ('v_cvt_pk_bf16_f32 v%d, v%d, v%d' % (s + 8, s + 8, s + 9), 'h1')]
    if init:
        it += [(x, None) for x in max_ops(s)]
        it += [('v_mov_b32 v%d, v%d' % (vT1, vT0), None),
               ('v_permlane32_swap_b32 v%d, v%d' % (vT0, vT1), None),
               ('v_max_f32 v%d, v%d, v%d' % (vT0, vT0, vT1), None)]
        n = NEGM[t]
        it += [('v_sub_f32 v%d, 0, v%d' % (n + i, vT0), None) for i in range(16)]
        it += [('v_sub_f32 v%d, v%d, v%d' % (s + i, s + i, vT0), None) for i in range(16)]
    elif not OPT['nomax']:
        it += [(x, None) for x in max_ops(s)]
        it += [('v_cmp_lt_f32 vcc, s%d, v%d' % (sTHR, vT0), 'brk')]
        it += [('s_cbranch_vccnz L_rare_%s' % tagname, None), ('L_back_%s:' % tagname, None)]
        rare_blocks.append((tagname, u))
    def tail(j):
        a, b = s + 2 * j, s + 2 * j + 1
        dst = s + j if j < 4 else s + 8 + (j - 4)
        r = []
        if init and j == 0:
            r += [('v_mov_b32 v%d, v%d' % (l0, a), None), ('v_mov_b32 v%d, v%d' % (l1, b), None)]
        else:
            r += [('v_add_f32 v%d, v%d, v%d' % (l0, l0, a), None), ('v_add_f32 v%d, v%d, v%d' % (l1, l1, b), None)]
        r += [('v_cvt_pk_bf16_f32 v%d, v%d, v%d' % (dst, a, b), 'h0' if j == 3 else ('h1' if j == 7 else None))]
        return r
    for j in range(8):
        a, b = s + 2 * j, s + 2 * j + 1
        tl = tail(j - 1) if j else []
        it += [('v_exp_f32 v%d, v%d' % (a, a), None)]
        it += tl[:1]
        it += [('v_exp_f32 v%d, v%d' % (b, b), None)]
        it += tl[1:]
    it += tail(7)
    return it

def rare_code(tag, u):
    t = UT[u]; s = SBUF[u % 3]; l0, l1 = vL[t]; n = NEGM[t]
    R = Emitter(); r = R.emit
    r('L_rare_%s:' % tag)
    r('s_nop 1')
    r('v_mov_b32 v%d, v%d' % (vT1, vT0))
    r('v_permlane32_swap_b32 v%d, v%d' % (vT0, vT1))
    r('v_max3_f32 v%d, v%d, v%d, 0' % (vT0, vT0, vT1))
    r('v_exp_f32 v%d, -v%d' % (vT1, vT0))
    for i in range(16): r('v_sub_f32 v%d, v%d, v%d' % (s + i, s + i, vT0))
    for i in range(16): r('v_sub_f32 v%d, v%d, v%d' % (n + i, n + i, vT0))
    r('v_mul_f32 v%d, v%d, v%d' % (l0, l0, vT1)); r('v_mul_f32 v%d, v%d, v%d' % (l1, l1, vT1))
    if t == 'C':
        for i in range(0, 64, 4):
            for k in range(4): r('v_accvgpr_read_b32 v%d, a%d' % (vTMP + k, aOC + i + k))
            for k in range(4): r('v_mul_f32 v%d, v%d, v%d' % (vTMP + k, vTMP + k, vT1))
            for k in range(4): r('v_accvgpr_write_b32 a%d, v%d' % (aOC + i + k, vTMP + k))
    else:
        b = OA if t == 'A' else OB
        for i in range(64): r('v_mul_f32 v%d, v%d, v%d' % (b + i, b + i, vT1))
    r('s_nop 1')
    r('s_branch L_back_%s' % tag)
    return R.seq

NT = ' nt'
def dma_items(which):
    sr = srd(sK) if which == 'K' else srd(sV)
    vo = vKD if which == 'K' else vVD
    slot = sSL[1] if which == 'K' else sSL[0]
    goff = 32768 if which == 'K' else 0
    items = []
    for g in range(2):
        pre = ['s_add_u32 m0, s%d, %d' % (slot, g * 4096), 's_add_u32 s%d, s%d, %d' % (sT0, sVG, goff + g * 4096)]
        for i in range(4):
            ld = 'buffer_load_dwordx4 v%d, %s, s%d offen offset:%d%s lds' % (vo, sr, sT0, i * 1024, NT)
            items.append((pre if i == 0 else []) + [ld])
    return items

class Sched:
    def __init__(self):
        self.stream = []
        self.ready = set()
    def push(self, items, key):
        self.stream += [(Ins(t), f, key) for (t, f) in items]
    def pop_emit(self):
        ins, f, key = self.stream.pop(0)
        e(ins)
        if f in ('h0', 'h1'): self.ready.add((key, f))
        return ins, f
    def flush_until(self, key, half):
        while (key, half) not in self.ready:
            self.pop_emit()
    def flush_unit(self, key):
        while self.stream and self.stream[0][2] == key:
            self.pop_emit()
    def fill(self, budget):
        used = 0
        while self.stream:
            ins, f, key = self.stream[0]
            if ins.kind != 'label':
                if used + ins.cost > budget: break
                if deficit(E.seq[-16:], ins): break
            self.pop_emit()
            used += ins.cost
            if f == 'brk': break
        while self.stream and self.stream[0][0].kind == 'label':
            self.pop_emit()

S = Sched()

def cost_of(t):
    i = Ins(t)
    return OPT['dmacost'] if i.kind == 'dma' else i.cost

def run_blocks(blocks):
    for b in blocks:
        for g, m in enumerate(b['mf']):
            if b['kind'] == 'PV':
                S.flush_until(b['key'], 'h0' if g < 4 else 'h1')
            if not OPT['nocompute']: e(m)
            used = 0
            for t in b['fixed'].get(g, []):
                e(t); used += cost_of(t)
            if g == 7 and b.get('after'): b['after']()
            S.fill(max(0, OPT['budget'] - used))

def body(j, first, name):
    blocks = []
    def blk(kind, u, jj):
        f = first and jj == j
        d = dict(kind=kind, u=u, key=(jj, u), mf=(qk_block(u, f) if kind == 'QK' else pv_block(u, f)), fixed={})
        if kind == 'QK':
            d['after'] = (lambda u=u, jj=jj, f=f: S.push(softmax_stream(u, f and u < 3, ('%s_%d' % (name, u)) if u < 8 else None), (jj, u))) if u < 8 else None
        blocks.append(d); return d
    B = {}
    order = []
    if not first: order.append(('PV', 7, j - 1))
    order.append(('QK', 0, j))
    if not first: order.append(('PV', 8, j - 1))
    for u in range(1, 9):
        order.append(('QK', u, j))
        if u < 8: order.append(('PV', u - 1, j))
    for (k, u, jj) in order:
        B[(k, u, jj - j)] = blk(k, u, jj)
    def add(bk, g, t):
        B[bk]['fixed'].setdefault(g, []).append(t)
    kx = lambda c: ['v_xor_b32 v%d, %d, v%d' % (vKA0, c, vKA0), 'v_xor_b32 v%d, %d, v%d' % (vKA1, c, vKA1)]
    vx = lambda c: ['v_xor_b32 v%d, %d, v%d' % (vVA, c, vVA)]
    XC = [2048, 6144, 2048]
    if not first:
        S.push(softmax_stream(8, False, '%s_8p' % name), (j - 1, 8))
    vupd = ['s_sub_u32 s%d, s%d, s%d' % (sT1, sSL[3], sSL[1]), 's_add_u32 s%d, s%d, s%d' % (sT1, sT1, sWC), 'v_add_u32 v%d, s%d, v%d' % (vVA, sT1, vVA)]
    if first:
        for kk in range(8): e(kread(kk))
        for t in kx(XC[0]): e(t)
        for t in vupd: e(t)
        for f in range(8):
            add(('QK', 0, 0), f, vread(f, 0)); add(('QK', 0, 0), f, vread(f, 1))
        for t in vx(XC[0]): add(('QK', 1, 0), 0, t)
    else:
        for kk in range(8): add(('PV', 7, -1), kk // 2 if kk < 4 else kk - 2, kread(kk))
        for t in kx(XC[0]): add(('PV', 7, -1), 6, t)
        for t in vupd: add(('PV', 7, -1), 7, t)
    for i, pvu in ((1, 1), (2, 3), (3, 5)):
        for kk in range(8): add(('PV', pvu, 0), kk, kread(kk))
        nb = ('QK', pvu + 2, 0)
        if i < 3:
            for t in kx(XC[i]): add(nb, 0, t)
        else:
            add(nb, 0, 's_sub_u32 s%d, s%d, s%d' % (sT1, sSL[4], sSL[2])); add(nb, 0, 's_add_u32 s%d, s%d, s%d' % (sT1, sT1, sWC))
            add(nb, 1, 'v_add_u32 v%d, s%d, v%d' % (vKA0, sT1, vKA0)); add(nb, 1, 'v_add_u32 v%d, s%d, v%d' % (vKA1, sT1, vKA1))
    vsets = [(1, ('PV', 2, 0), ('QK', 4, 0)), (2, ('PV', 4, 0), ('QK', 6, 0)), (3, ('PV', 6, 0), ('QK', 8, 0))]
    if not first: vsets.insert(0, (0, ('PV', 8, -1), ('QK', 1, 0)))
    for i, pb, qb in vsets:
        span = 12
        for r in range(16):
            f, ii = r >> 1, r & 1
            g = max(f, (r * span) // 16)
            add(pb if g < 8 else qb, g % 8, vread(f, ii))
        if i < 3:
            for t in vx(XC[i]): add(qb, 5, t)
    if not OPT['nodma']:
        dm = dma_items('V') + dma_items('K')
        if first:
            sites = [(('QK', 1, 0), g) for g in range(8)] + [(('PV', 0, 0), g) for g in range(8)]
        else:
            sites = [(('QK', 0, 0), g) for g in range(8)] + [(('PV', 0, 0), g) for g in range(0, 8, 2)] + [(('QK', 2, 0), g) for g in range(0, 8, 2)]
        for it, (bk, g) in zip(dm, sites):
            for t in it: add(bk, g, t)
    rot = ['s_mov_b32 s%d, s%d' % (sT1, sSL[0]), 's_mov_b32 s%d, s%d' % (sT2, sSL[1]),
           's_mov_b32 s%d, s%d' % (sSL[0], sSL[2]), 's_mov_b32 s%d, s%d' % (sSL[1], sSL[3]), 's_mov_b32 s%d, s%d' % (sSL[2], sSL[4]),
           's_mov_b32 s%d, s%d' % (sSL[3], sT1), 's_mov_b32 s%d, s%d' % (sSL[4], sT2),
           's_add_u32 s%d, s%d, 32768' % (sVG, sVG)]
    for n, t in enumerate(rot): add(('QK', 7, 0), 3 + n // 2, t)
    add(('QK', 8, 0), 6, 's_add_u32 s%d, s%d, 1' % (sIT, sIT))
    add(('QK', 8, 0), 7, 's_cmp_lt_u32 s%d, 8' % sIT)
    run_blocks(blocks)
    S.flush_unit((j, 7))
    assert not S.stream
    e('s_waitcnt vmcnt(8) lgkmcnt(0)' if not OPT['nodma'] else 's_waitcnt lgkmcnt(0)')
    e('s_barrier')

def tail(j):
    S.push(softmax_stream(8, False, 'tail_8'), (j, 8))
    blocks = [dict(kind='PV', u=7, key=(j, 7), mf=pv_block(7, False), fixed={}),
              dict(kind='PV', u=8, key=(j, 8), mf=pv_block(8, False), fixed={})]
    old = OPT['budget']; OPT['budget'] = 28
    run_blocks(blocks)
    OPT['budget'] = old

def qload():
    ntq = ' nt' if OPT['ntq'] else ''
    for ti, t in enumerate('ABC'):
        e('s_add_u32 s%d, s%d, %d' % (sT0, sHO, [0, 8192, 65536][ti]))
        for kk in range(8):
            e('buffer_load_dwordx4 %s, v%d, %s, s%d offen offset:%d%s' % (vr(32 * ti + 4 * kk, 4), vQC if t == 'C' else vQO, srd(sQ), sT0, kk * 32, ntq))

def qscale(nafter):
    for ti, t in enumerate('ABC'):
        for kk in range(8):
            if kk % 4 == 0:
                e('s_waitcnt vmcnt(%d)' % min(63, nafter + 24 - (ti * 8 + kk + 4)))
            for r in range(4):
                x = 32 * ti + 4 * kk + r
                t0, t1 = vTMP + 2 * r, vTMP + 2 * r + 1
                e('v_lshlrev_b32 v%d, 16, v%d' % (t0, x))
                e('v_and_b32 v%d, 0xffff0000, v%d' % (t1, x))
            for r in range(4):
                t0, t1 = vTMP + 2 * r, vTMP + 2 * r + 1
                e('v_mul_f32 v%d, s%d, v%d' % (t0, sC, t0)); e('v_mul_f32 v%d, s%d, v%d' % (t1, sC, t1))
            for r in range(4):
                t0, t1 = vTMP + 2 * r, vTMP + 2 * r + 1
                e('v_cvt_pk_bf16_f32 v%d, v%d, v%d' % (t0, t0, t1))
            for r in range(4):
                e('v_accvgpr_write_b32 a%d, v%d' % (aQ[t] + 4 * kk + r, vTMP + 2 * r))

def rowsum(t, dst):
    l0, l1 = vL[t]
    e('v_add_f32 v%d, v%d, v%d' % (l0, l0, l1))
    e('v_mov_b32 v%d, v%d' % (l1, l0))
    e('v_permlane32_swap_b32 v%d, v%d' % (l0, l1))
    e('v_add_f32 v%d, v%d, v%d' % (dst, l0, l1))

def pack_store(base, ndt, inv, voff, soff_text, dt0=0):
    st = ' nt' if OPT['ntst'] else ''
    for dt in range(ndt):
        for gp in range(2):
            b = base + 16 * dt + 8 * gp
            if inv is not None:
                for r in range(8): e('v_mul_f32 v%d, v%d, v%d' % (b + r, b + r, inv))
            for r in range(4): e('v_cvt_pk_bf16_f32 v%d, v%d, v%d' % (b + r, b + 2 * r, b + 2 * r + 1))
            e('v_permlane32_swap_b32 v%d, v%d' % (b, b + 2))
            e('v_permlane32_swap_b32 v%d, v%d' % (b + 1, b + 3))
            e('buffer_store_dwordx4 %s, v%d, %s, %s offen offset:%d%s' % (vr(b, 4), voff, srd(sO), soff_text, (dt0 + dt) * 64 + gp * 32, st))

def epilogue():
    e('s_lshl_b32 s%d, s%d, 13' % (sT0, sW))
    e('s_sub_u32 s%d, s%d, s%d' % (sT1, sSL[0], sT0))
    e('s_sub_u32 s%d, s%d, s%d' % (sT2, sSL[1], sT0))
    a_own, a_rd0, a_rd1 = vTMP, vTMP + 1, vTMP + 2
    e('v_lshlrev_b32 v%d, 4, v%d' % (a_own, vLANE))
    e('s_lshl_b32 s%d, s%d, 12' % (sT0, sW))
    e('v_add_u32 v%d, s%d, v%d' % (a_rd0, sT0, a_own))
    e('v_add_u32 v%d, s%d, v%d' % (a_rd1, sT2, a_rd0))
    e('v_add_u32 v%d, s%d, v%d' % (a_rd0, sT1, a_rd0))
    e('s_cmp_lt_u32 s%d, 2' % sW)
    e('s_cselect_b32 s%d, s%d, s%d' % (sT1, sT1, sT2))
    e('s_and_b32 s%d, s%d, 1' % (sT2, sW))
    e('s_lshl_b32 s%d, s%d, 14' % (sT2, sT2))
    e('s_add_u32 s%d, s%d, s%d' % (sT1, sT1, sT2))
    e('v_add_u32 v%d, s%d, v%d' % (a_own, sT1, a_own))
    for i in range(16):
        e('ds_write_b128 v%d, %s offset:%d' % (a_own, ar(aOC + 4 * i, 4), i * 1024))
    a_ownblk = vTMP + 3
    e('v_add_u32 v%d, s%d, v%d' % (a_ownblk, sT0, a_own))
    own = SBUF[0]
    for i in range(4):
        e('ds_read_b128 %s, v%d offset:%d' % (vr(own + 4 * i, 4), a_ownblk, i * 1024))
    rowsum('C', vTMP + 5)
    e('v_mov_b32 v%d, v%d' % (vTMP + 4, NEGM['C']))
    e('ds_write_b64 v%d, %s' % (a_ownblk, vr(vTMP + 4, 2)))
    rowsum('A', vT0)
    e('v_rcp_f32 v%d, v%d' % (vT0, vT0))
    pack_store(OA, 4, vT0, vQO, 's%d' % sHO)
    e('s_waitcnt lgkmcnt(0)')
    e('s_barrier')
    P = OA
    P = [SBUF[1], SBUF[2], NEGM['A'], NEGM['B']]
    ml = vTMP + 6
    e('v_subrev_u32 v%d, s%d, v%d' % (vT0, sT0, a_rd0))
    e('v_subrev_u32 v%d, s%d, v%d' % (vT1, sT0, a_rd1))
    for x in range(4):
        e('ds_read_b64 %s, v%d offset:%d' % (vr(ml + 2 * x, 2), vT0 if x < 2 else vT1, (x & 1) * 16384 + x * 4096))
    for x in range(4):
        for i in range(4):
            e('ds_read_b128 %s, v%d offset:%d' % (vr(P[x] + 4 * i, 4), a_rd0 if x < 2 else a_rd1, (x & 1) * 16384 + i * 1024))
    rowsum('B', vT0)
    e('v_rcp_f32 v%d, v%d' % (vT0, vT0))
    e('s_add_u32 s%d, s%d, 8192' % (sT1, sHO))
    pack_store(OB, 4, vT0, vQO, 's%d' % sT1)
    e('s_waitcnt lgkmcnt(0)')
    e('s_barrier')
    e('v_min_f32 v%d, v%d, v%d' % (vT0, ml, ml + 2))
    e('v_min3_f32 v%d, v%d, v%d, v%d' % (vT0, vT0, ml + 4, ml + 6))
    for x in range(4): e('v_sub_f32 v%d, v%d, v%d' % (ml + 2 * x, vT0, ml + 2 * x))
    e('v_sub_f32 v%d, v%d, v%d' % (vT1, vT0, vTMP + 4))
    for x in range(4): e('v_exp_f32 v%d, v%d' % (ml + 2 * x, ml + 2 * x))
    e('v_exp_f32 v%d, v%d' % (vT1, vT1))
    e('v_mul_f32 v%d, v%d, v%d' % (vT0, ml, ml + 1))
    for x in range(1, 4): e('v_fmac_f32 v%d, v%d, v%d' % (vT0, ml + 2 * x, ml + 2 * x + 1))
    e('v_rcp_f32 v%d, v%d' % (vT0, vT0))
    for r in range(16): e('v_mul_f32 v%d, v%d, v%d' % (own + r, own + r, vT1))
    for x in range(4):
        e('s_cmp_eq_u32 s%d, %d' % (sW, x))
        e('s_cbranch_scc1 L_skipc_%d' % x)
        for r in range(16): e('v_fmac_f32 v%d, v%d, v%d' % (own + r, P[x] + r, ml + 2 * x))
        e('L_skipc_%d:' % x)
    e('s_lshl_b32 s%d, s%d, 6' % (sT1, sW))
    e('s_add_u32 s%d, s%d, s%d' % (sT1, sT1, sHO))
    e('s_add_u32 s%d, s%d, 65536' % (sT1, sT1))
    pack_store(own, 1, vT0, vQC, 's%d' % sT1)

def prologue():
    e('s_cmp_ge_u32 s2, 256'); e('s_cbranch_scc1 L_end')
    e('s_load_dwordx4 s[4:7], s[0:1], 0')
    e('s_load_dwordx4 s[8:11], s[0:1], 16')
    e('v_lshrrev_b32 v1, 6, v0')
    e('v_readfirstlane_b32 s%d, v1' % sW)
    e('v_and_b32 v%d, 63, v0' % vLANE)
    e('s_waitcnt lgkmcnt(0)')
    e('s_mul_i32 s28, s2, 147456')
    for (d, p) in ((sQ, 4), (sO, 10)):
        e('s_add_u32 s%d, s%d, s28' % (d, p)); e('s_addc_u32 s%d, s%d, 0' % (d + 1, p + 1)); e('s_mov_b32 s%d, 147456' % (d + 2)); e('s_mov_b32 s%d, 0x20000' % (d + 3))
    e('s_lshl_b32 s28, s2, 19')
    for (d, p) in ((sK, 6), (sV, 8)):
        e('s_add_u32 s%d, s%d, s28' % (d, p)); e('s_addc_u32 s%d, s%d, 0' % (d + 1, p + 1)); e('s_mov_b32 s%d, 524288' % (d + 2)); e('s_mov_b32 s%d, 0x20000' % (d + 3))
    L = vLANE
    e('v_and_b32 v4, 31, v%d' % L); e('v_lshlrev_b32 v5, 8, v4'); e('v_lshrrev_b32 v6, 5, v%d' % L)
    e('v_lshlrev_b32 v7, 4, v6'); e('v_add_u32 v%d, v5, v7' % vQC)
    e('v_lshlrev_b32 v7, 14, v1'); e('v_add_u32 v%d, v%d, v7' % (vQO, vQC))
    e('v_lshrrev_b32 v3, 4, v%d' % L); e('v_lshlrev_b32 v3, 6, v3')
    e('v_bfe_u32 v7, v%d, 2, 2' % L); e('v_lshlrev_b32 v7, 8, v7'); e('v_add_u32 v3, v3, v7')
    e('v_lshlrev_b32 v7, 13, v1'); e('v_add_u32 v3, v3, v7')
    e('v_and_b32 v7, 3, v%d' % L); e('v_lshlrev_b32 v8, 4, v7'); e('v_add_u32 v%d, v3, v8' % vVD)
    e('v_xor_b32 v7, v7, v1'); e('v_lshlrev_b32 v8, 4, v7'); e('v_add_u32 v%d, v3, v8' % vKD)
    e('v_lshrrev_b32 v7, 3, v4'); e('v_lshlrev_b32 v8, 13, v7')
    e('v_xor_b32 v7, v7, v6'); e('v_lshlrev_b32 v7, 4, v7'); e('v_add_u32 v8, v8, v7')
    e('v_bfe_u32 v7, v4, 2, 1'); e('v_lshlrev_b32 v7, 10, v7'); e('v_add_u32 v8, v8, v7')
    e('v_and_b32 v7, 3, v4'); e('v_lshlrev_b32 v7, 6, v7'); e('v_add_u32 v8, v8, v7')
    e('v_lshlrev_b32 v7, 11, v1'); e('v_add_u32 v%d, v8, v7' % vKA0)
    e('v_xor_b32 v%d, 32, v%d' % (vKA1, vKA0))
    e('v_lshlrev_b32 v8, 10, v6')
    e('v_bfe_u32 v7, v%d, 2, 2' % L); e('v_lshlrev_b32 v7, 6, v7'); e('v_add_u32 v8, v8, v7')
    e('v_bfe_u32 v7, v%d, 4, 1' % L); e('v_lshlrev_b32 v7, 5, v7'); e('v_add_u32 v8, v8, v7')
    e('v_and_b32 v7, 3, v%d' % L); e('v_lshlrev_b32 v7, 3, v7'); e('v_add_u32 v8, v8, v7')
    e('v_xor_b32 v7, 3, v1'); e('v_lshlrev_b32 v7, 11, v7'); e('v_add_u32 v8, v8, v7')
    e('v_add_u32 v%d, %d, v8' % (vVA, 4 * 32768))
    e('s_xor_b32 s%d, s%d, 3' % (sT0, sW)); e('s_sub_u32 s%d, s%d, s%d' % (sWC, sW, sT0)); e('s_lshl_b32 s%d, s%d, 11' % (sWC, sWC))
    e('s_lshl_b32 s%d, s%d, 13' % (sT0, sW))
    for n, sl in enumerate((3, 4, 0, 1, 2)):
        e('s_add_u32 s%d, s%d, %d' % (sSL[n], sT0, sl * 32768))
    e('s_mov_b32 s%d, 0' % sHO)
    e('s_mov_b32 s%d, 0' % sHEAD)
    e('s_mov_b32 s%d, 0x%x' % (sTHR, f2u(OPT['T'])))
    e('s_mov_b32 s%d, 0x%x' % (sC, f2u(math.log2(math.e) / math.sqrt(128.0))))
    qload()
    for (sr, vo, slot, goff) in ((sK, vKD, sSL[2], 0), (sV, vVD, sSL[3], 0), (sK, vKD, sSL[4], 32768)):
        for g in range(2):
            e('s_add_u32 m0, s%d, %d' % (slot, g * 4096)); e('s_mov_b32 s%d, %d' % (sT0, goff + g * 4096))
            for i in range(4):
                e('buffer_load_dwordx4 v%d, %s, s%d offen offset:%d%s lds' % (vo, srd(sr), sT0, i * 1024, NT))
    e('s_mov_b32 s%d, 32768' % sVG)
    qscale(24)
    e('s_waitcnt vmcnt(8)')
    e('s_barrier')

prologue()
e('L_head:')
e('s_mov_b32 s%d, 0' % sIT)
n0 = len(E.seq)
body(0, True, 'f')
if OPT['align']: e('.p2align %d' % OPT['align'])
e('L_loop:')
n1 = len(E.seq)
body(1, False, 'l')
n2 = len(E.seq)
e('s_cbranch_scc1 L_loop')
sv_seq, sv_rare = E.seq, list(rare_blocks)
E.seq = list(sv_seq)
body(2, False, 'l')
b1 = [i.text for i in sv_seq[n1:n2]]; b2 = [i.text for i in E.seq[n2 + 1:]]
assert b1 == b2, 'loop body not periodic'
assert check_hazards(E.seq, 'backedge') == 0
E.seq = sv_seq; rare_blocks[:] = sv_rare
S.ready.add(((7, 7), 'h0')); S.ready.add(((7, 7), 'h1'))
tail(7)
epilogue()
e('s_add_u32 s%d, s%d, 1' % (sHEAD, sHEAD))
e('s_cmp_ge_u32 s%d, 2' % sHEAD)
e('s_cbranch_scc1 L_end')
e('s_add_u32 s%d, s%d, 73728' % (sHO, sHO))
qload()
qscale(0)
e('s_branch L_head')
e('L_end:')
e('s_endpgm')
assert check_hazards(E.seq, 'main') == 0
rare = []
for tag, u in rare_blocks: rare += rare_code(tag, u)

hdr = open('standalone__mha_softmax__near_ridge.s.ref').read().split('; Override launch')[0]
print(hdr.rstrip())
print('; @launch grid=(256,1,1) block=(256,1,1) lds=163840')
print('.amdgcn_target "amdgcn-amd-amdhsa--gfx950"\n.text\n.globl %s\n.p2align 8\n.type %s,@function\n%s:' % (KN, KN, KN))
print(E.text())
print(E.text(rare))
print('''.section .rodata,"a"
.p2align 6
.amdhsa_kernel %s
  .amdhsa_next_free_vgpr 512
  .amdhsa_next_free_sgpr 102
  .amdhsa_accum_offset 256
  .amdhsa_group_segment_fixed_size 0
  .amdhsa_kernarg_size 48
  .amdhsa_user_sgpr_count 2
  .amdhsa_user_sgpr_kernarg_segment_ptr 1
  .amdhsa_system_sgpr_workgroup_id_x 1
.end_amdhsa_kernel''' % KN)
loop = sv_seq[n1:n2]
from collections import Counter
sys.stderr.write('loop body: %d instrs %s\n' % (len(loop), dict(Counter(i.kind for i in loop))))
```

```python
import re

def expand(op):
    op = op.strip()
    op = op.lstrip('-')
    if op.startswith('abs(') or op.startswith('|'):
        op = op.replace('abs(', '').replace(')', '').replace('|', '')
    m = re.fullmatch(r'([vas])\[(\d+):(\d+)\]', op)
    if m:
        return [m.group(1) + str(i) for i in range(int(m.group(2)), int(m.group(3)) + 1)]
    m = re.fullmatch(r'([vas])(\d+)', op)
    if m:
        return [op]
    if op in ('vcc', 'exec', 'm0', 'scc'):
        return [op]
    if op in ('vcc_lo', 'vcc_hi'):
        return ['vcc']
    return []

TRANS = ('v_exp_f32', 'v_log_f32', 'v_rcp_f32', 'v_rsq_f32', 'v_sqrt_f32')

class Ins:
    __slots__ = ('text', 'op', 'kind', 'rd', 'wr', 'srcc', 'srcab', 'cost', 'note')
    def __init__(self, text):
        self.text = text
        self.note = None
        t = text.split(';')[0].strip()
        self.srcc = []; self.srcab = []
        if t.endswith(':') or t.startswith('.') or t == '':
            self.op = 'label'; self.kind = 'label'; self.rd = []; self.wr = []; self.cost = 0
            return
        parts = t.split(None, 1)
        op = parts[0]
        base = re.sub(r'_(e32|e64|sdwa|dpp)$', '', op)
        self.op = base
        rest = parts[1] if len(parts) > 1 else ''
        ops = [o.strip() for o in re.split(r',(?![^\[]*\])', rest)] if rest else []
        mods = ''
        if ops:
            lp = ops[-1].split(None, 1)
            ops[-1] = lp[0]
            mods = lp[1] if len(lp) > 1 else ''
        E = [expand(o) for o in ops]
        flat = lambda ls: [r for l in ls for r in l]
        rd = []; wr = []
        self.cost = 4
        if base.startswith('v_mfma'):
            self.kind = 'mfma'; wr = E[0]; rd = flat(E[1:]); self.srcc = E[3]; self.srcab = E[1] + E[2]; self.cost = 8
        elif base.startswith('v_cmp'):
            self.kind = 'valu'; wr = E[0]; rd = flat(E[1:])
        elif base.startswith('v_permlane32_swap') or base.startswith('v_permlane16_swap'):
            self.kind = 'valu'; wr = flat(E); rd = flat(E)
        elif base.startswith('v_fmac') or base.startswith('v_writelane'):
            self.kind = 'valu'; wr = E[0]; rd = flat(E)
        elif base.startswith('v_'):
            self.kind = 'trans' if base in TRANS else 'valu'
            if self.kind == 'trans': self.cost = 8
            if base == 'v_nop':
                pass
            else:
                wr = E[0]; rd = flat(E[1:])
                if base in ('v_add_co_u32', 'v_addc_co_u32'):
                    wr = E[0] + E[1]; rd = flat(E[2:])
        elif base.startswith('ds_read'):
            self.kind = 'dsr'; wr = E[0]; rd = flat(E[1:])
        elif base.startswith('ds_write'):
            self.kind = 'dsw'; rd = flat(E)
        elif base.startswith('buffer_load'):
            if re.search(r'\blds\b', mods):
                self.kind = 'dma'; rd = flat(E) + ['m0']
            else:
                self.kind = 'vld'; wr = E[0]; rd = flat(E[1:])
        elif base.startswith('buffer_store'):
            self.kind = 'vst'; rd = flat(E)
        elif base == 's_waitcnt':
            self.kind = 'wait'
        elif base == 's_nop':
            self.kind = 'nop'; self.cost = 4 * (int(ops[0], 0) + 1)
        elif base == 's_barrier':
            self.kind = 'barrier'
        elif base.startswith('s_cbranch') or base == 's_branch' or base == 's_endpgm':
            self.kind = 'branch'
            if 'vcc' in base: rd = ['vcc']
            if 'scc' in base: rd = ['scc']
        elif base.startswith('s_cmp'):
            self.kind = 'salu'; rd = flat(E); wr = ['scc']
        elif base.startswith('s_load') or base.startswith('s_memtime') or base.startswith('s_memrealtime'):
            self.kind = 'smem'; wr = E[0]; rd = flat(E[1:])
        elif base in ('s_setprio', 's_sleep'):
            self.kind = 'salu'
        elif base.startswith('s_'):
            self.kind = 'salu'; wr = E[0]; rd = flat(E[1:])
        else:
            raise ValueError('unknown instr ' + text)
        self.rd = rd; self.wr = wr
    def states(self):
        if self.kind == 'label': return 0
        if self.kind == 'nop': return self.cost // 4
        return 1

def need_states(p, c):
    n = 0
    pw = set(p.wr);
    isvalu = lambda x: x.kind in ('valu', 'trans')
    if p.kind == 'mfma':
        k = 4 if '16x16x32' in p.op else 0
        if c.kind == 'mfma':
            if pw & set(c.srcab): n = max(n, 12 - k)
            if pw & set(c.srcc) and p.wr != c.srcc: n = max(n, 10 - k)
        elif isvalu(c):
            if pw & (set(c.rd) | set(c.wr)): n = max(n, 12 - k)
            if set(p.srcc) & set(c.wr): n = max(n, 7 - k)
        elif c.kind in ('dsr', 'dsw', 'vld', 'vst', 'dma'):
            if pw & (set(c.rd) | set(c.wr)): n = max(n, 12 - k)
    if isvalu(p):
        if c.kind == 'mfma' and pw & set(c.rd): n = max(n, 2)
        if p.kind == 'trans' and c.kind == 'valu' and pw & set(c.rd): n = max(n, 1)
        if c.op.startswith('v_permlane') and pw & set(c.rd): n = max(n, 2)
        if c.op in ('v_readfirstlane_b32', 'v_readlane_b32') and pw & set(c.rd): n = max(n, 1)
        sw = {r for r in pw if r[0] == 's' or r == 'vcc'}
        if sw:
            if isvalu(c) and sw & set(c.rd): n = max(n, 2)
            if c.kind in ('vld', 'vst', 'dma') and sw & set(c.rd): n = max(n, 5)
    if p.kind == 'salu' and 'm0' in pw and c.kind == 'dma': n = max(n, 1)
    if p.kind == 'vst' and ('x4' in p.op or 'x3' in p.op):
        if set(p.rd) & set(c.wr): n = max(n, 2)
    return n

def deficit(hist, c):
    d = 0; dist = 0
    for p in reversed(hist):
        if dist >= 12: break
        n = need_states(p, c)
        if n > dist: d = max(d, n - dist)
        dist += p.states()
    return d

def check_hazards(seq, name=''):
    bad = 0
    for i, c in enumerate(seq):
        if c.kind == 'label': continue
        d = deficit(seq[max(0, i - 16):i], c)
        if d:
            bad += 1
            print('HAZARD %s: short %d states before: %s' % (name, d, c.text))
    return bad

class Emitter:
    def __init__(self):
        self.seq = []
        self.ldsq = []
        self.stamp = 0
        self.merge = 3
    def raw(self, ins):
        self.seq.append(ins)
    def lgkm_need(self, ins):
        regs = set(ins.rd) | set(ins.wr)
        last = -1
        for i, (d, st) in enumerate(self.ldsq):
            if set(d.wr) & regs: last = i
        return last
    def emit(self, text, auto=True):
        ins = text if isinstance(text, Ins) else Ins(text)
        if ins.kind == 'wait':
            m = re.search(r'lgkmcnt\((\d+)\)', ins.text)
            if m:
                n = int(m.group(1))
                self.ldsq = self.ldsq[len(self.ldsq) - n:] if n else []
                if n > len(self.ldsq): pass
            self.seq.append(ins); return ins
        if auto and ins.kind != 'label':
            last = self.lgkm_need(ins)
            if last >= 0:
                while last + 1 < len(self.ldsq) and self.ldsq[last + 1][1] <= self.stamp - self.merge:
                    last += 1
                n = len(self.ldsq) - 1 - last
                n = min(n, 15)
                self.seq.append(Ins('s_waitcnt lgkmcnt(%d)' % n))
                self.ldsq = self.ldsq[len(self.ldsq) - n:] if n else []
            d = deficit(self.seq[-16:], ins)
            if d:
                self.seq.append(Ins('s_nop %d' % (d - 1)))
        self.seq.append(ins)
        if ins.kind in ('dsr', 'dsw'):
            self.ldsq.append((ins, self.stamp))
        if ins.kind == 'mfma': self.stamp += (0.5 if '16x16x32' in ins.op else 1)
        return ins
    def text(self, seq=None):
        out = []
        for i in (self.seq if seq is None else seq):
            out.append(i.text if i.kind == 'label' else '    ' + i.text)
        return '\n'.join(out)
```

```python
import sys, math, struct
from asmlib import *

OPT = dict(nodma=0, stamp=0, TH=65536.0, ntq=1, ntst=1, pk=1, pro=0, lag=3, k16=-1, dma0=9, dmad=5, rdm=9, cap=8, verbose=0, urg=3, nock=0)
for a in sys.argv[1:]:
    k, v = a.split('=')
    assert k in OPT, k
    OPT[k] = float(v) if '.' in v else int(v)
LAG = OPT['lag']

KN = "standalone__mha_softmax__near_ridge_kernel"
def f2u(x): return struct.unpack('<I', struct.pack('<f', x))[0]

SB = {0: 128, 4: 136, 1: 144, 2: 152, 3: 160}
PB = {0: 168, 1: 172, 2: 176, 3: 180, 4: 184}
NEGM = {0: 188, 1: 192, 2: 196, 3: 200, 4: 204}
LM = [208, 212]; LC = [216, 220]
ET = 224
vKA, vVA0, vVA1, vD = 228, 229, 230, 231
cST, cR, cWQ, cWO, cWQC, cRC, cMLW, cMLR = range(232, 240)
vQCR = 240
RT = 248
IT = 252
aOC = 0
aQ = {0: 32, 1: 48, 2: 64, 3: 80, 4: 96}
aK, aV, aONE, aQN = 112, 144, 176, 192

sW = 3
sQ, sK, sV, sO = 12, 16, 20, 24
sSL = [44, 45, 46, 47, 48]
sVG = 30
sT0, sT1, sT2, sT3 = 34, 35, 28, 29
sIT, sTHR, sWC, sHEAD = 36, 38, 42, 43
sQS = [64, 65, 66, 67, 68]
sOS = [72, 73, 74, 75, 76]
sC2 = 80

def vr(b, n): return 'v[%d:%d]' % (b, b + n - 1)
def ar(b, n): return 'a[%d:%d]' % (b, b + n - 1)
def srd(b): return 's[%d:%d]' % (b, b + 3)
def oacc(t, dt): return ar(aOC + 4 * dt, 4) if t == 4 else vr(32 * t + 4 * dt, 4)
MF = 'v_mfma_f32_16x16x32_bf16'

UT = [0, 1, 2, 3, 4, 0, 1, 2, 3, 0, 1, 2, 3, 4, 0, 1, 2, 3]
UP = [0, 0, 0, 0, 1, 1, 1, 1, 1, 2, 2, 2, 2, 3, 3, 3, 3, 3]
NU = 18
PFIRST = [0, 4, 9, 13]; PLAST = [3, 8, 12, 17]
def lpar(h):
    t = UT[h]
    return sum(1 for x in range(h) if (UT[x] == 4) == (t == 4)) & 1
def lregs(h):
    L = LC if UT[h] == 4 else LM
    p = lpar(h)
    return L[p], L[1 - p]
INIT = (0, 1, 2, 3, 4)

E = Emitter()
e = E.emit
rare_blocks = []

def qk_block(h, init):
    t = UT[h]; s = SB[t]
    out = []
    for kk in range(8):
        ks, kh = kk >> 1, kk & 1
        d = vr(s + 4 * kh, 4)
        c = d if ks else ('0' if init else vr(NEGM[t], 4))
        out.append('%s %s, %s, %s, %s' % (MF, d, ar(aK + 4 * kk, 4), ar(aQ[t] + 4 * ks, 4), c))
    return out
def pv_block(h, init):
    t = UT[h]
    return ['%s %s, %s, %s, %s' % (MF, oacc(t, dt), ar(aV + 4 * dt, 4), vr(PB[t], 4), '0' if init else oacc(t, dt)) for dt in range(8)]
def sum_mf(h, init):
    t = UT[h]; lo, ln = lregs(h)
    z = init and t in (0, 4)
    return '%s %s, %s, %s, %s' % (MF, vr(ln, 4), ar(aONE + 4 * (t & 3), 4), vr(PB[t], 4), '0' if z else vr(lo, 4))

def kread(kk): return 'ds_read_b128 %s, v%d offset:%d' % (ar(aK + 4 * kk, 4), vKA, (kk & 1) * 1024 + (kk >> 1) * 256)
def vread(dt, kh): return 'ds_read_b64_tr_b16 %s, v%d offset:%d' % (ar(aV + 4 * dt + 2 * kh, 2), vVA1 if dt & 1 else vVA0, kh * 1024 + (dt >> 1) * 256)

def rowmax_ops(s, a, b):
    return ['v_max3_f32 v%d, v%d, v%d, v%d' % (a, s, s + 1, s + 2), 'v_max3_f32 v%d, v%d, v%d, v%d' % (b, s + 3, s + 4, s + 5),
            'v_max3_f32 v%d, v%d, v%d, v%d' % (a, a, s + 6, s + 7), 'v_max_f32 v%d, v%d, v%d' % (a, a, b),
            'v_mov_b32 v%d, v%d' % (b, a), 'v_permlane32_swap_b32 v%d, v%d' % (a, b), 'v_max_f32 v%d, v%d, v%d' % (a, a, b),
            'v_mov_b32 v%d, v%d' % (b, a), 'v_permlane16_swap_b32 v%d, v%d' % (a, b), 'v_max_f32 v%d, v%d, v%d' % (a, a, b)]

def softmax_items(h, init):
    t = UT[h]; s = SB[t]; p = PB[t]
    it = []
    if init:
        it += rowmax_ops(s, IT, IT + 1)
        it += ['v_sub_f32 v%d, v%d, v%d' % (s + i, s + i, IT) for i in range(8)]
        it += ['v_sub_f32 v%d, 0, v%d' % (NEGM[t] + i, IT) for i in range(4)]
    for kh in range(2):
        it += ['v_exp_f32 v%d, v%d' % (ET + r, s + 4 * kh + r) for r in range(4)]
        it += ['v_cvt_pk_bf16_f32 v%d, v%d, v%d' % (p + 2 * kh + r, ET + 2 * r, ET + 2 * r + 1) for r in range(2)]
    return it

def check_items(h, tag):
    t = UT[h]; lo, ln = lregs(h)
    rare_blocks.append((tag, h))
    return ['v_cmp_nlt_f32 vcc, v%d, s%d' % (ln + (t & 3), sTHR) if False else 'v_cmp_ngt_f32 vcc, s%d, v%d' % (sTHR, ln + (t & 3)),
            ['s_cbranch_vccnz L_rare_%s' % tag, 'L_back_%s:' % tag]]

def rare_code(tag, h):
    t = UT[h]; s = SB[t]; p = PB[t]; lo, ln = lregs(h); n = NEGM[t]
    R = Emitter(); r = R.emit
    r('L_rare_%s:' % tag)
    r('s_nop 7')
    for x in rowmax_ops(s, RT, RT + 1): r(x)
    r('v_max_f32 v%d, 0, v%d' % (RT, RT))
    r('v_exp_f32 v%d, -v%d' % (RT + 1, RT))
    for i in range(8): r('v_sub_f32 v%d, v%d, v%d' % (s + i, s + i, RT))
    for i in range(4): r('v_sub_f32 v%d, v%d, v%d' % (n + i, n + i, RT))
    for i in range(8): r('v_exp_f32 v%d, v%d' % (s + i, s + i))
    r('v_mul_f32 v%d, v%d, v%d' % (lo + (t & 3), lo + (t & 3), RT + 1))
    for i in range(4): r('v_cvt_pk_bf16_f32 v%d, v%d, v%d' % (p + i, s + 2 * i, s + 2 * i + 1))
    if t == 4:
        for i in range(0, 32, 2):
            for k in range(2): r('v_accvgpr_read_b32 v%d, a%d' % (RT + 2 + k, aOC + i + k))
            for k in range(2): r('v_mul_f32 v%d, v%d, v%d' % (RT + 2 + k, RT + 2 + k, RT + 1))
            for k in range(2): r('v_accvgpr_write_b32 a%d, v%d' % (aOC + i + k, RT + 2 + k))
    else:
        for i in range(32): r('v_mul_f32 v%d, v%d, v%d' % (32 * t + i, 32 * t + i, RT + 1))
    r(sum_mf(h, False))
    r('s_nop 7')
    r('s_branch L_back_%s' % tag)
    return R.seq

NT = ' nt'
def dma_items(which):
    sr = srd(sK) if which == 'K' else srd(sV)
    slot = sSL[1] if which == 'K' else sSL[0]
    goff = 32768 if which == 'K' else 0
    items = []
    for g in range(2):
        items += ['s_add_u32 m0, s%d, %d' % (slot, g * 4096), 's_add_u32 s%d, s%d, %d' % (sT0, sVG, goff + g * 4096)]
        for i in range(4):
            items.append('buffer_load_dwordx4 v%d, %s, s%d offen offset:%d%s lds' % (vD, sr, sT0, i * 1024, NT))
    return items
def qld_text(t, n, dst):
    return 'buffer_load_dwordx4 %s, v%d, %s, s%d offen offset:%d%s' % (dst, cST, srd(sQ), sQS[t], n * 1024, ' nt' if OPT['ntq'] else '')

class Item:
    def __init__(self, txt, early, dead, newgap=False):
        self.ins = [Ins(x) for x in (txt if isinstance(txt, list) else [txt])]
        self.cost = sum(8 if i.kind in ('dma', 'vld', 'vst') else i.cost for i in self.ins)
        self.early = early; self.dead = dead; self.newgap = newgap; self.hard = dead
class Chain:
    def __init__(self, name, items): self.name = name; self.items = items; self.lastgap = -99
def mkchain(name, texts, early, dead, backprop=True, newgap=()):
    n = len(texts)
    ea = early if isinstance(early, list) else [early] * n
    de = list(dead) if isinstance(dead, list) else [dead] * n
    its = [Item(texts[i], ea[i], de[i], i in newgap) for i in range(n)]
    fixdead(its)
    return Chain(name, its)
def fixdead(its):
    for i in range(len(its) - 2, -1, -1):
        nx = its[i + 1]
        step = 1.0 if (nx.cost >= 8 or its[i].cost >= 8 or nx.newgap) else 0.5
        its[i].dead = max(its[i].early, min(its[i].dead, nx.dead - step))

EST = {}
def run_spine(spine, chains, name):
    est = 0
    def place(ch, gap):
        it = ch.items.pop(0)
        assert it.early <= gap <= it.hard, (name, ch.name, it.ins[0].text, it.early, gap)
        for i in it.ins: e(i)
        ch.lastgap = gap
        return it.cost
    def avail(ch, gap):
        if not ch.items: return False
        it = ch.items[0]
        if it.early > gap: return False
        if it.newgap and ch.lastgap == gap: return False
        return True
    def clean(ch):
        i = ch.items[0].ins[0]
        return deficit(E.seq[-16:], i) == 0 and E.lgkm_need(i) < 0
    for gap in range(-1, len(spine)):
        n0 = len(E.seq)
        if gap >= 0: e(spine[gap])
        nxt = Ins(spine[gap + 1]) if gap + 1 < len(spine) else None
        used = 0
        while True:
            f = [c for c in chains if c.items and math.floor(c.items[0].dead) <= gap]
            if not f: break
            f.sort(key=lambda c: c.items[0].dead)
            used += place(f[0], gap)
        if gap >= 0:
            while True:
                cap = OPT['cap'] - used - (4 if (nxt is not None and E.lgkm_need(nxt) >= 0) else 0)
                c = [x for x in chains if avail(x, gap) and x.items[0].cost <= cap and x.items[0].dead < 1e8 and clean(x)]
                if not c: break
                c.sort(key=lambda x: x.items[0].dead)
                top = c[0]
                if top.items[0].cost < 8 and cap >= 8:
                    second = any(x is not top and x.items[0].cost < 8 for x in c) or \
                             (len(top.items) > 1 and top.items[1].cost < 8 and top.items[1].early <= gap and not top.items[1].newgap and top.items[1].dead < 1e8)
                    big = [x for x in c if x.items[0].cost >= 8]
                    if not second and big and top.items[0].dead - gap > OPT['urg']: top = big[0]
                used += place(top, gap)
    return

def estimate(seq):
    tot = 0; cur = None; over = 0; idle = 0
    for i in seq:
        if i.kind == 'mfma':
            if cur is not None:
                tot += max(16, cur); over += max(0, cur - 16); idle += max(0, 16 - cur)
            cur = 8
        elif cur is not None:
            cur += (8 if i.kind in ('dma', 'vld', 'vst') else i.cost)
    tot += max(16, cur)
    return tot, over, idle

def st_flush():
    if not OPT['stamp']: return
    e('s_waitcnt lgkmcnt(0)')
    for r in (50, 52):
        e('s_mov_b32 m0, s54'); e('s_add_u32 s54, s54, 1'); e('v_writelane_b32 v255, s%d, m0' % r)
def st_a(rt=0):
    if OPT['stamp']: e('%s s[50:51]' % ('s_memrealtime' if rt else 's_memtime'))
def st_b(rt=0):
    if OPT['stamp'] == 2:
        e('s_memtime s[50:51]'); e('s_memrealtime s[52:53]'); return
    if OPT['stamp']: e('%s s[52:53]' % ('s_memrealtime' if rt else 's_memtime'))

INF = 1e9
def body(first, last, name, k16):
    spine = []; pos = {}
    def addblk(key, mfs):
        pos[key] = len(spine); spine.extend(mfs)
    if not first: addblk(('PV', NU - 1 - LAG - NU), pv_block(NU - 1 - LAG, False))
    for h in range(NU):
        g = h - LAG
        if g >= 0 or not first: addblk(('SUM', g), [sum_mf(g % NU, first and g in INIT)])
        addblk(('QK', h), qk_block(h, first and h in INIT))
        if h < NU - 1 and (g >= 0 or not first): addblk(('PV', g), pv_block(g % NU, first and g in INIT))
    N = len(spine); END = N - 1
    chains = []
    sm = []
    if not first:
        tx = softmax_items(16, False)
        sm += [Item(x, -1 + 1, pos[('SUM', -2)] - 1) for x in tx[len(tx) - k16:]] if k16 else []
        sm += [Item(x, 0, pos[('SUM', -1)] - 1) for x in softmax_items(17, False)]
    for h in range(NU - 1):
        tx = softmax_items(h, first and h in INIT)
        if h == 16 and k16: tx = tx[:len(tx) - k16]
        d = pos[('SUM', h)] - 1 if ('SUM', h) in pos else END
        if first and h in INIT and h < 4: d = min(d, pos[('QK', h + 5)] - 2)
        sm += [Item(x, pos[('QK', h)] + 7, d) for x in tx]
    fixdead(sm)
    chains.append(Chain('sm', sm))
    ck = []
    for g in range(-LAG, NU - LAG):
        if ('SUM', g) not in pos or (first and g in INIT): continue
        d = pos[('PV', g)] - 1 if ('PV', g) in pos else END
        c, b = check_items(g % NU, '%s_%d' % (name, g + LAG))
        if OPT['nock'] == 1: b = b[1:]
        ck += [Item(c, pos[('SUM', g)], d - 1), Item(b, pos[('SUM', g)], d, True)]
    chains.append(Chain('ck', ck))
    XC = [2048, 6144, 2048]
    RDM = OPT['rdm']
    kc = []
    for p in range(4):
        use = pos[('QK', PFIRST[p])]
        for kk in range(8):
            if p == 0: kc.append(Item(kread(kk), -1 if first else 0, -1 if first else max(kk // 2, use + kk - RDM)))
            else: kc.append(Item(kread(kk), pos[('QK', PLAST[p - 1])] + kk, use + kk - RDM))
        nd = pos[('QK', PLAST[p])] - 1
        if p < 3: kc.append(Item('v_xor_b32 v%d, %d, v%d' % (vKA, XC[p], vKA), 0, nd))
        else:
            kc += [Item('s_sub_u32 s%d, s%d, s%d' % (sT1, sSL[4], sSL[2]), 0, END - 40), Item('s_add_u32 s%d, s%d, s%d' % (sT1, sT1, sWC), 0, END - 40),
                   Item('v_add_u32 v%d, s%d, v%d' % (vKA, sT1, vKA), 0, END - 40)]
            rot = ['s_mov_b32 s%d, s%d' % (sT1, sSL[0]), 's_mov_b32 s%d, s%d' % (sT2, sSL[1]),
                   's_mov_b32 s%d, s%d' % (sSL[0], sSL[2]), 's_mov_b32 s%d, s%d' % (sSL[1], sSL[3]), 's_mov_b32 s%d, s%d' % (sSL[2], sSL[4]),
                   's_mov_b32 s%d, s%d' % (sSL[3], sT1), 's_mov_b32 s%d, s%d' % (sSL[4], sT2), 's_add_u32 s%d, s%d, 32768' % (sVG, sVG)]
            kc += [Item(x, 0, END - 20) for x in rot]
            if not last:
                kc += [Item('s_add_u32 s%d, s%d, 1' % (sIT, sIT), 0, END - 10), Item('s_cmp_lt_u32 s%d, 7' % sIT, 0, END - 5)]
    fixdead(kc)
    chains.append(Chain('k', kc))
    vc = [Item('s_sub_u32 s%d, s%d, s%d' % (sT3, sSL[3], sSL[1]), 0, 12), Item('s_add_u32 s%d, s%d, s%d' % (sT3, sT3, sWC), 0, 12),
          Item('v_add_u32 v%d, s%d, v%d' % (vVA0, sT3, vVA0), 0, 12), Item('v_add_u32 v%d, s%d, v%d' % (vVA1, sT3, vVA1), 0, 12)]
    for p in range(4):
        use = pos[('PV', PFIRST[p])]
        for dt in range(8):
            for kh in range(2):
                if p == 0: ea = 0 if first else pos[('PV', -1)] + dt
                else: ea = pos[('PV', PLAST[p - 1])] + dt
                vc.append(Item(vread(dt, kh), ea, use + dt - RDM))
        if p < 3:
            nd = pos[('PV', PLAST[p])] - 1
            vc += [Item('v_xor_b32 v%d, %d, v%d' % (x, XC[p], x), 0, nd) for x in (vVA0, vVA1)]
    fixdead(vc)
    chains.append(Chain('v', vc))
    dv, dk = ([], []) if OPT['nodma'] else (dma_items('V'), dma_items('K'))
    if last:
        pre = ['s_mov_b32 s%d, s%d' % (sOS[k], sQS[k]) for k in range(5)] + ['s_add_u32 s%d, s%d, 73728' % (sQS[k], sQS[k]) for k in range(5)]
        dm = pre + [qld_text(4, n, vr(vQCR + 4 * n, 4)) for n in range(2)] + dv
        dm += [qld_text(t, n, ar(aQN + 16 * t + 4 * n, 4)) for t in range(4) for n in range(4)] + dk
    else:
        dm = dv + dk
    dc = []; nm = 0
    for x in dm:
        ea = OPT['dma0'] + nm * OPT['dmad']
        if x.startswith('buffer'):
            dc.append(Item(x, ea, ea + 2)); nm += 1
        else: dc.append(Item(x, max(0, ea - 8), ea + 2))
    assert not dc or dc[-1].dead < pos[('QK', PLAST[2])]
    fixdead(dc)
    chains.append(Chain('dma', dc))
    run_spine(spine, chains, name)
    for c in chains: assert not c.items, (c.name, [i.ins[0].text for i in c.items])
    nov = OPT['nodma'] or last
    if OPT['stamp']:
        st_flush(); e('s_cmp_lt_u32 s%d, 7' % sIT); st_a()
        if not nov: e('s_waitcnt vmcnt(8)')
        e('s_barrier'); st_b()
        return
    e('s_waitcnt vmcnt(8) lgkmcnt(0)' if not nov else 's_waitcnt lgkmcnt(0)')
    e('s_barrier')

WO = [128, 129]; R = [130, 131]; WQ = [132, 133]; CW = [134, 135]; RC = [136, 137, 138, 139]; MLW, MLR = 140, 141; WQC = [142, 143]
OWN, PART, ML = 144, 160, 176
QT = [(188, 196), (200, 224)]
X, Y = sSL[0], sSL[1]
def a2(dst, s, c): return ['v_add_u32 v%d, s%d, v%d' % (dst[0], s, c), 'v_xor_b32 v%d, 64, v%d' % (dst[1], dst[0])]
def qfrag_reads(W, dst, off=0):
    return ['ds_read_b128 %s, v%d offset:%d' % (ar(dst + 4 * ks, 4), W[ks & 1], off + 128 * (ks >> 1)) for ks in range(4)]
def qscale_group(src_is_a, src, k, waddr, woff):
    T, Qd = QT[k & 1]
    g = []; x = src
    if src_is_a:
        g += ['v_accvgpr_read_b32 v%d, a%d' % (Qd + r, src + r) for r in range(4)]
        x = Qd
    for r in range(4):
        g += ['v_lshlrev_b32 v%d, 16, v%d' % (T + 2 * r, x + r), 'v_and_b32 v%d, 0xffff0000, v%d' % (T + 2 * r + 1, x + r)]
    for r in range(4):
        if OPT['pk']: g.append('v_pk_mul_f32 %s, %s, s[%d:%d]' % (vr(T + 2 * r, 2), vr(T + 2 * r, 2), sC2, sC2 + 1))
        else: g += ['v_mul_f32 v%d, s%d, v%d' % (T + 2 * r + h, sC2, T + 2 * r + h) for h in range(2)]
    g += ['v_cvt_pk_bf16_f32 v%d, v%d, v%d' % (x + r, T + 2 * r, T + 2 * r + 1) for r in range(4)]
    g.append('ds_write_b128 v%d, %s offset:%d' % (waddr, vr(x, 4), woff))
    return g
def qscale_tile(src_is_a, src, t):
    g = [qscale_group(src_is_a, src + 4 * n, n, R[n & 1], 1024 * n) for n in range(4)]
    g[3] = g[3] + qfrag_reads(WQ, aQ[t])
    return g
def qscale_c(): return [qscale_group(False, vQCR + 4 * n, 0, R[n], 4096 + 1024 * n) for n in range(2)]

LFIN = LM[0]; LCFIN = LC[0]

def tail(k16):
    F = NU - 1 - LAG
    spine = []; pos = {}
    def addblk(key, mfs):
        pos[key] = len(spine); spine.extend(mfs)
    for g in range(F, NU):
        if g + 1 < NU: addblk(('SUM', g + 1), [sum_mf(g + 1, False)])
        addblk(('PV', g), pv_block(g, False))
    END = len(spine) - 1
    tx = softmax_items(16, False)
    sm = [Item(x, -1, pos[('SUM', 16)] - 1) for x in tx[len(tx) - k16:]] if k16 else []
    sm += [Item(x, -1, pos[('SUM', 17)] - 1) for x in softmax_items(17, False)]
    fixdead(sm)
    ck = []
    for g in range(F + 1, NU):
        d = (pos[('SUM', g + 1)] if g + 1 < NU else pos[('PV', g)]) - 1
        c, b = check_items(g, 'tail_%d' % g)
        ck += [Item(c, pos[('SUM', g)], d - 1), Item(b, pos[('SUM', g)], d, True)]
    ex = ['v_and_b32 v%d, 0xf00, v%d' % (CW[1], cWQ), 'v_add3_u32 v%d, v%d, v%d, s%d' % (CW[0], CW[1], cWQ, X), 'v_xor_b32 v%d, 64, v%d' % (CW[1], CW[0])]
    ex += ['ds_write_b128 v%d, %s offset:%d' % (CW[dt & 1], ar(aOC + 4 * dt, 4), 128 * (dt >> 1)) for dt in range(8)]
    ex += ['v_add_u32 v%d, s%d, v%d' % (MLW, Y, cMLW), 'v_mov_b32 v%d, v%d' % (NEGM[4] + 1, LCFIN), 'ds_write_b64 v%d, %s offset:6144' % (MLW, vr(NEGM[4], 2))]
    ex += a2(R, Y, cR) + a2(WO, Y, cWO) + a2(WQ, Y, cWQ) + a2(WQC, Y, cWQC)
    ex += ['v_add_u32 v%d, s%d, v%d' % (RC[0], X, cRC), 'v_xor_b32 v%d, 16, v%d' % (RC[1], RC[0]), 'v_xor_b32 v%d, 64, v%d' % (RC[2], RC[0]),
           'v_xor_b32 v%d, 0x50, v%d' % (RC[3], RC[0]), 'v_add_u32 v%d, s%d, v%d' % (MLR, Y, cMLR)]
    exc = Chain('ex', [Item(x, 0, END) for x in ex])
    old = OPT['cap']; OPT['cap'] = 12
    run_spine(spine, [Chain('sm', sm), Chain('ck', ck), exc], 'tail')
    OPT['cap'] = old
    e('s_waitcnt vmcnt(%d)' % (16 if OPT['nodma'] else 32))
    for g in qscale_c():
        for t in g: e(t)

def merge(*streams):
    n = max(len(s) for s in streams)
    pos = [0] * len(streams)
    for step in range(1, n + 1):
        for k, s_ in enumerate(streams):
            tgt = (len(s_) * step + n - 1) // n
            while pos[k] < tgt:
                it = s_[pos[k]]; pos[k] += 1
                for t in (it if isinstance(it, list) else [it]): e(t)
def flat(gs): return [t for g in gs for t in g]

INV = RT
def norm_ops(t):
    base = 32 * t
    out = []; pend = []
    for p in range(4):
        b = base + 8 * p
        if OPT['pk']:
            iv = INV + (t & ~1); sel = t & 1
            out += ['v_pk_mul_f32 %s, %s, %s op_sel:[0,%d] op_sel_hi:[1,%d]' % (vr(b + r, 2), vr(b + r, 2), vr(iv, 2), sel, sel) for r in range(0, 8, 2)]
        else:
            out += ['v_mul_f32 v%d, v%d, v%d' % (b + r, b + r, INV + t) for r in range(8)]
        out += pend
        out += ['v_cvt_pk_bf16_f32 v%d, v%d, v%d' % (b + r, b + 2 * r, b + 2 * r + 1) for r in range(4)]
        pend = ['v_permlane16_swap_b32 v%d, v%d' % (b, b + 2), 'v_permlane16_swap_b32 v%d, v%d' % (b + 1, b + 3),
                'ds_write_b128 v%d, %s offset:%d' % (WO[p & 1], vr(b, 4), 128 * (p >> 1))]
    rd = ['ds_read_b128 %s, v%d offset:%d' % (vr(base + 8 * n + 4, 4), R[n & 1], 1024 * n) for n in range(4)]
    return out, pend + rd
def tile_stores(t):
    st = ' nt' if OPT['ntst'] else ''
    return ['buffer_store_dwordx4 %s, v%d, %s, s%d offen offset:%d%s' % (vr(32 * t + 8 * n + 4, 4), cST, srd(sO), sOS[t], 1024 * n, st) for n in range(4)]

def epilogue():
    for t in range(4): e('v_rcp_f32 v%d, v%d' % (INV + t, LFIN + t))
    e('s_waitcnt lgkmcnt(0)')
    e('s_barrier')
    rd = ['ds_read_b128 %s, v%d offset:6144' % (vr(ML, 4), MLR), 'v_xor_b32 v%d, 0x2000, v%d' % (MLR, MLR), 'ds_read_b128 %s, v%d offset:6144' % (vr(ML + 4, 4), MLR)]
    rd += ['ds_read_b128 %s, v%d offset:%d' % (vr(OWN + 4 * k, 4), RC[k], 2048 * (k >> 1)) for k in range(4)]
    for k in range(4):
        rd.append(['v_xor_b32 v%d, 0x2000, v%d' % (RC[k], RC[k]), 'ds_read_b128 %s, v%d offset:%d' % (vr(PART + 4 * k, 4), RC[k], 2048 * (k >> 1))])
    rd += qfrag_reads(WQC, aQ[4], 4096)
    n = [norm_ops(t) for t in range(4)]
    merge(rd, n[0][0])
    cf = []; t0 = [IT, IT + 1]
    for k in range(2):
        m = lambda i: ML + 4 * i + 2 * k
        l = lambda i: ML + 4 * i + 2 * k + 1
        x = ['v_min_f32 v%d, v%d, v%d' % (t0[k], m(0), m(1))]
        x += ['v_sub_f32 v%d, v%d, v%d' % (m(i), t0[k], m(i)) for i in range(2)]
        x += ['v_exp_f32 v%d, v%d' % (m(i), m(i)) for i in range(2)]
        x += ['v_mul_f32 v%d, v%d, v%d' % (t0[k], m(0), l(0)), 'v_fmac_f32 v%d, v%d, v%d' % (t0[k], m(1), l(1))]
        x += ['v_rcp_f32 v%d, v%d' % (t0[k], t0[k])]
        x += ['v_mul_f32 v%d, v%d, v%d' % (m(i), m(i), t0[k]) for i in range(2)]
        cf.append(x)
    cv = [t for pair in zip(*cf) for t in pair]
    for r in range(16): cv.append('v_mul_f32 v%d, v%d, v%d' % (OWN + r, OWN + r, ML + 2 * (r >> 3)))
    for r in range(16): cv.append('v_fmac_f32 v%d, v%d, v%d' % (OWN + r, PART + r, ML + 4 + 2 * (r >> 3)))
    for k in range(2):
        cv += ['v_cvt_pk_bf16_f32 v%d, v%d, v%d' % (OWN + 8 * k + r, OWN + 8 * k + 2 * r, OWN + 8 * k + 2 * r + 1) for r in range(4)]
    st = ' nt' if OPT['ntst'] else ''
    cs = ['buffer_store_dwordx4 %s, v%d, %s, s%d offen offset:%d%s' % (vr(OWN + 8 * k, 4), cST, srd(sO), sOS[4], 1024 * k, st) for k in range(2)]
    def seq(pre, main, sts):
        h = len(main) // 2
        for t in main[:4]: e(t)
        for t in pre: e(t)
        for t in main[4:h]: e(t)
        merge(main[h:], sts) if sts else [e(t) for t in main[h:]]
    seq(n[0][1], n[1][0], tile_stores(0))
    seq(n[1][1], n[2][0], tile_stores(1))
    seq(n[2][1], n[3][0], tile_stores(2))
    seq(n[3][1], cv, tile_stores(3))
    for t in cs: e(t)

def prologue():
    e('s_cmp_ge_u32 s2, 256'); e('s_cbranch_scc1 L_end')
    if OPT['stamp']:
        st_a(); st_b(1); e('s_mov_b32 s54, 0'); e('v_mov_b32 v255, 0'); e('s_load_dwordx2 s[60:61], s[0:1], 40')
    e('s_load_dwordx4 s[4:7], s[0:1], 0')
    e('s_load_dwordx4 s[8:11], s[0:1], 16')
    W, L, Qr, G, A, B, C = 144, 145, 146, 147, 148, 149, 150
    e('v_lshrrev_b32 v%d, 6, v0' % W)
    e('v_and_b32 v%d, 63, v0' % L)
    e('v_readfirstlane_b32 s%d, v%d' % (sW, W))
    e('v_lshlrev_b32 v%d, 4, v%d' % (cST, L))
    e('s_mul_i32 s28, s2, 147456')
    e('s_lshl_b32 s29, s2, 19')
    e('s_lshl_b32 s%d, s%d, 14' % (sQS[0], sW))
    for k in range(1, 4): e('s_add_u32 s%d, s%d, %d' % (sQS[k], sQS[0], 4096 * k))
    e('s_lshl_b32 s%d, s%d, 11' % (sQS[4], sW)); e('s_add_u32 s%d, s%d, 65536' % (sQS[4], sQS[4]))
    e('v_lshrrev_b32 v%d, 4, v%d' % (G, L)); e('v_lshlrev_b32 v%d, 6, v%d' % (A, G))
    e('v_bfe_u32 v%d, v%d, 2, 2' % (B, L)); e('v_lshl_add_u32 v%d, v%d, 8, v%d' % (A, B, A))
    e('v_lshl_add_u32 v%d, v%d, 13, v%d' % (A, W, A))
    e('v_and_b32 v%d, 1, v%d' % (C, W))
    e('v_and_b32 v%d, 3, v%d' % (B, L)); e('v_lshlrev_b32 v%d, 4, v%d' % (B, B)); e('v_lshlrev_b32 v%d, 5, v%d' % (vD, C))
    e('v_xor_b32 v%d, v%d, v%d' % (B, B, vD)); e('v_add_u32 v%d, v%d, v%d' % (vD, A, B))
    e('s_lshl_b32 s%d, s%d, 13' % (sT0, sW))
    for n, sl in enumerate((3, 4, 0, 1, 2)):
        e('s_add_u32 s%d, s%d, %d' % (sSL[n], sT0, sl * 32768))
    e('s_waitcnt lgkmcnt(0)')
    st_flush()
    def mk_srd(d, p, off, size):
        e('s_add_u32 s%d, s%d, s%d' % (d, p, off)); e('s_addc_u32 s%d, s%d, 0' % (d + 1, p + 1)); e('s_mov_b32 s%d, %d' % (d + 2, size)); e('s_mov_b32 s%d, 0x20000' % (d + 3))
    mk_srd(sQ, 4, 28, 147456)
    for n in range(2): e(qld_text(4, n, vr(vQCR + 4 * n, 4)))
    for t in range(4):
        for n in range(4): e(qld_text(t, n, vr(16 * t + 4 * n, 4)))
    mk_srd(sK, 6, 29, 524288); mk_srd(sV, 8, 29, 524288); mk_srd(sO, 10, 28, 147456)
    def dma_tile(sr, slot, goff):
        out = []
        for g in range(2):
            for i in range(4):
                pre = ['s_add_u32 m0, s%d, %d' % (slot, g * 4096), 's_mov_b32 s%d, %d' % (sT1, goff + g * 4096)] if i == 0 else []
                out.append(pre + ['buffer_load_dwordx4 v%d, %s, s%d offen offset:%d%s lds' % (vD, srd(sr), sT1, i * 1024, NT)])
        return out
    extra = dma_tile(sK, sSL[2], 0) + dma_tile(sV, sSL[3], 0) + dma_tile(sK, sSL[4], 32768)
    issued = 18
    npre = {0: 8, 1: 16, 2: 24}[OPT['pro']]
    for g in extra[:npre]:
        for t in g: e(t)
    issued += npre
    extra = extra[npre:]
    e('v_and_b32 v%d, 15, v%d' % (Qr, L))
    e('v_lshrrev_b32 v%d, 2, v%d' % (B, Qr)); e('v_lshlrev_b32 v%d, 13, v%d' % (A, B))
    e('v_and_b32 v%d, 1, v%d' % (B, B)); e('v_lshlrev_b32 v%d, 1, v%d' % (B, B)); e('v_xor_b32 v%d, v%d, v%d' % (B, B, G)); e('v_lshl_add_u32 v%d, v%d, 4, v%d' % (A, B, A))
    e('v_and_b32 v%d, 3, v%d' % (B, Qr)); e('v_lshl_add_u32 v%d, v%d, 6, v%d' % (A, B, A))
    e('v_lshl_add_u32 v%d, v%d, 11, v%d' % (vKA, C, A))
    e('v_lshlrev_b32 v%d, 13, v%d' % (A, G)); e('v_lshl_add_u32 v%d, v%d, 3, v%d' % (A, B, A))
    e('v_lshrrev_b32 v%d, 2, v%d' % (B, Qr)); e('v_lshl_add_u32 v%d, v%d, 6, v%d' % (A, B, A))
    e('v_and_b32 v%d, 1, v%d' % (B, G)); e('v_lshl_add_u32 v%d, v%d, 5, v%d' % (A, B, A))
    e('v_xor_b32 v%d, 3, v%d' % (B, C)); e('v_lshl_add_u32 v%d, v%d, 11, v%d' % (A, B, A))
    e('v_add_u32 v%d, %d, v%d' % (vVA0, 4 * 32768, A)); e('v_xor_b32 v%d, 32, v%d' % (vVA1, vVA0))
    e('s_and_b32 s%d, s%d, 1' % (sT0, sW)); e('s_xor_b32 s%d, s%d, 3' % (sWC, sT0)); e('s_sub_u32 s%d, s%d, s%d' % (sWC, sT0, sWC)); e('s_lshl_b32 s%d, s%d, 11' % (sWC, sWC))
    e('s_mov_b32 s%d, 0' % sHEAD)
    e('s_mov_b32 s%d, 0x%x' % (sTHR, f2u(OPT['TH'])))
    cc = f2u(math.log2(math.e) / math.sqrt(128.0))
    e('s_mov_b32 s%d, 0x%x' % (sC2, cc)); e('s_mov_b32 s%d, 0x%x' % (sC2 + 1, cc))
    e('v_xor_b32 v%d, v%d, v%d' % (A, Qr, G)); e('v_lshlrev_b32 v%d, 4, v%d' % (A, A)); e('v_lshl_add_u32 v%d, v%d, 8, v%d' % (cR, G, A))
    e('v_and_b32 v%d, 7, v%d' % (B, Qr)); e('v_xor_b32 v%d, v%d, v%d' % (A, B, G)); e('v_lshlrev_b32 v%d, 4, v%d' % (A, A)); e('v_lshl_add_u32 v%d, v%d, 8, v%d' % (cWQ, Qr, A))
    e('v_and_b32 v%d, 1, v%d' % (A, G)); e('v_lshlrev_b32 v%d, 1, v%d' % (A, A)); e('v_xor_b32 v%d, v%d, v%d' % (A, A, B))
    e('v_lshrrev_b32 v%d, 1, v%d' % (B, G)); e('v_xor_b32 v%d, v%d, v%d' % (A, A, B)); e('v_lshlrev_b32 v%d, 4, v%d' % (A, A)); e('v_lshl_add_u32 v%d, v%d, 8, v%d' % (cWO, Qr, A))
    e('v_lshrrev_b32 v%d, 3, v%d' % (B, Qr)); e('v_mul_u32_u24 v%d, 6144, v%d' % (A, B)); e('v_add_u32 v%d, v%d, v%d' % (A, A, cWQ))
    e('v_lshlrev_b32 v%d, 13, v%d' % (cWQC, C)); e('v_sub_u32 v%d, v%d, v%d' % (cWQC, A, cWQC))
    e('v_lshlrev_b32 v%d, 6, v%d' % (A, B)); e('v_and_b32 v%d, 3, v%d' % (B, Qr)); e('v_lshl_add_u32 v%d, v%d, 4, v%d' % (A, B, A))
    e('v_bfe_u32 v%d, v%d, 2, 1' % (B, Qr)); e('v_lshl_add_u32 v%d, v%d, 3, v%d' % (cMLW, B, A))
    e('v_lshlrev_b32 v%d, 4, v%d' % (A, G)); e('v_lshl_add_u32 v%d, v%d, 6, v%d' % (cMLR, C, A))
    e('v_lshlrev_b32 v%d, 1, v%d' % (A, Qr)); e('v_xor_b32 v%d, v%d, v%d' % (A, A, G)); e('v_lshlrev_b32 v%d, 4, v%d' % (A, A))
    e('v_lshl_add_u32 v%d, v%d, 9, v%d' % (A, G, A)); e('v_lshl_add_u32 v%d, v%d, 12, v%d' % (cRC, C, A))
    e('v_and_b32 v%d, 3, v%d' % (B, L)); e('v_mov_b32 v%d, 0x3f803f80' % W)
    for t in range(4):
        e('v_cmp_eq_u32 vcc, %d, v%d' % (t, B)); e('v_cndmask_b32 v%d, 0, v%d, vcc' % (A, W))
        for k in range(4): e('v_accvgpr_write_b32 a%d, v%d' % (aONE + 4 * t + k, A))
    e('s_mov_b32 s%d, 32768' % sVG)
    for t in a2(R, Y, cR) + a2(WQ, Y, cWQ) + a2(WQC, Y, cWQC): e(t)
    groups = qscale_c() + [g for t in range(4) for g in qscale_tile(False, 16 * t, t)]
    for qi, g in enumerate(groups):
        if qi % 2 == 0:
            e('s_waitcnt vmcnt(%d)' % (issued - (qi + 2)))
        for x in g: e(x)
        if extra:
            for x in extra.pop(0): e(x)
            issued += 1
    assert not extra
    e('s_waitcnt lgkmcnt(0)')
    e('s_barrier')
    for t in qfrag_reads(WQC, aQ[4], 4096): e(t)
    st_a()
    e('s_waitcnt vmcnt(8) lgkmcnt(0)')
    e('s_barrier')
    st_b()

import io, contextlib
def gen_loop(pre_seq, k16):
    pre_rare = list(rare_blocks)
    hist = pre_seq
    br = [Ins('s_cbranch_scc1 L_loop')]
    for attempt in range(4):
        E.seq = list(hist); rare_blocks[:] = pre_rare
        m1 = len(E.seq)
        body(False, False, 'l', k16)
        bd = E.seq[m1:]
        with contextlib.redirect_stdout(io.StringIO()):
            ok = check_hazards(pre_seq[-40:] + bd[:60]) == 0 and check_hazards(bd[-40:] + br + bd[:60]) == 0
        if ok: break
        hist = bd + br if attempt == 0 else [i for i in bd if i.kind == 'mfma'][-8:] + bd[-2:]
    assert ok
    return bd, br

prologue()
e('L_head:')
e('s_mov_b32 s%d, 0' % sIT)
base_seq = list(E.seq)
k16 = OPT['k16']
if k16 < 0:
    best = None
    for k in range(0, 13):
        E.seq = list(base_seq); rare_blocks[:] = []
        body(True, False, 'f', k)
        bd, br = gen_loop(list(E.seq), k)
        c = estimate(bd)
        if OPT['verbose']: sys.stderr.write('k16=%d est %s\n' % (k, c))
        if best is None or c[0] < best[0]: best = (c[0], k)
    k16 = best[1]
E.seq = list(base_seq); rare_blocks[:] = []
n0 = len(E.seq)
body(True, False, 'f', k16)
fb = E.seq[n0:]
e('L_loop:')
pre_seq = list(E.seq)
bd, br = gen_loop(pre_seq, k16)
E.seq = pre_seq + bd + br
n2 = len(E.seq)
body(False, True, 'z', k16)
lb = E.seq[n2:]
tail(k16)
st_flush(); st_a()
epilogue()
st_b(); st_flush()
e('s_add_u32 s%d, s%d, 1' % (sHEAD, sHEAD))
e('s_cmp_ge_u32 s%d, 2' % sHEAD)
e('s_cbranch_scc1 L_fin')
st_a()
nk = 0 if OPT['nodma'] else 8
for t in range(4):
    e('s_waitcnt vmcnt(%d)' % (18 + nk + 4 * (3 - t)))
    for x in flat(qscale_tile(True, aQN + 16 * t, t)): e(x)
e('s_waitcnt lgkmcnt(0)')
e('s_barrier')
st_b()
e('s_branch L_head')
e('L_fin:')
if OPT['stamp']:
    e('s_waitcnt vmcnt(0)'); st_a(); st_b(1); st_flush()
    e('s_lshl_b32 s28, s2, 2'); e('s_add_u32 s28, s28, s%d' % sW); e('s_lshl_b32 s28, s28, 8')
    e('s_add_u32 s60, s60, s28'); e('s_addc_u32 s61, s61, 0'); e('s_mov_b32 s62, 256'); e('s_mov_b32 s63, 0x20000')
    e('v_lshrrev_b32 v254, 2, v%d' % cST)
    e('buffer_store_dword v255, v254, s[60:63], 0 offen')
e('L_end:')
e('s_endpgm')
assert check_hazards(E.seq, 'main') == 0
rare = []
for tag, u in rare_blocks: rare += rare_code(tag, u)

hdr = open('standalone__mha_softmax__near_ridge.s.ref').read().split('; Override launch')[0]
print(hdr.rstrip())
print('; @launch grid=(256,1,1) block=(256,1,1) lds=163840')
print('.amdgcn_target "amdgcn-amd-amdhsa--gfx950"\n.text\n.globl %s\n.p2align 8\n.type %s,@function\n%s:' % (KN, KN, KN))
print(E.text())
print(E.text(rare))
print('''.section .rodata,"a"
.p2align 6
.amdhsa_kernel %s
  .amdhsa_next_free_vgpr 512
  .amdhsa_next_free_sgpr 102
  .amdhsa_accum_offset 256
  .amdhsa_group_segment_fixed_size 0
  .amdhsa_kernarg_size 48
  .amdhsa_user_sgpr_count 2
  .amdhsa_user_sgpr_kernarg_segment_ptr 1
  .amdhsa_system_sgpr_workgroup_id_x 1
.end_amdhsa_kernel''' % KN)
from collections import Counter
sys.stderr.write('k16=%d loop: %d instrs %s est(tot,over,idle) loop %s first %s last %s\n' % (k16, len(bd), dict(Counter(i.kind for i in bd)), estimate(bd), estimate(fb), estimate(lb)))
```

```python
import re

def expand(op):
    op = op.strip()
    op = op.lstrip('-')
    if op.startswith('abs(') or op.startswith('|'):
        op = op.replace('abs(', '').replace(')', '').replace('|', '')
    m = re.fullmatch(r'([vas])\[(\d+):(\d+)\]', op)
    if m:
        return [m.group(1) + str(i) for i in range(int(m.group(2)), int(m.group(3)) + 1)]
    m = re.fullmatch(r'([vas])(\d+)', op)
    if m:
        return [op]
    if op in ('vcc', 'exec', 'm0', 'scc'):
        return [op]
    if op in ('vcc_lo', 'vcc_hi'):
        return ['vcc']
    return []

TRANS = ('v_exp_f32', 'v_log_f32', 'v_rcp_f32', 'v_rsq_f32', 'v_sqrt_f32')

class Ins:
    __slots__ = ('text', 'op', 'kind', 'rd', 'wr', 'srcc', 'srcab', 'cost', 'note')
    def __init__(self, text):
        self.text = text
        self.note = None
        t = text.split(';')[0].strip()
        self.srcc = []; self.srcab = []
        if t.endswith(':') or t.startswith('.') or t == '':
            self.op = 'label'; self.kind = 'label'; self.rd = []; self.wr = []; self.cost = 0
            return
        parts = t.split(None, 1)
        op = parts[0]
        base = re.sub(r'_(e32|e64|sdwa|dpp)$', '', op)
        self.op = base
        rest = parts[1] if len(parts) > 1 else ''
        ops = [o.strip() for o in re.split(r',(?![^\[]*\])', rest)] if rest else []
        mods = ''
        if ops:
            lp = ops[-1].split(None, 1)
            ops[-1] = lp[0]
            mods = lp[1] if len(lp) > 1 else ''
        E = [expand(o) for o in ops]
        flat = lambda ls: [r for l in ls for r in l]
        rd = []; wr = []
        self.cost = 4
        if base.startswith('v_mfma'):
            self.kind = 'mfma'; wr = E[0]; rd = flat(E[1:]); self.srcc = E[3]; self.srcab = E[1] + E[2]; self.cost = 8
        elif base.startswith('v_cmp'):
            self.kind = 'valu'; wr = E[0]; rd = flat(E[1:])
        elif base.startswith('v_permlane32_swap') or base.startswith('v_permlane16_swap'):
            self.kind = 'valu'; wr = flat(E); rd = flat(E)
        elif base.startswith('v_fmac') or base.startswith('v_writelane'):
            self.kind = 'valu'; wr = E[0]; rd = flat(E)
        elif base.startswith('v_'):
            self.kind = 'trans' if base in TRANS else 'valu'
            if self.kind == 'trans': self.cost = 8
            if base == 'v_nop':
                pass
            else:
                wr = E[0]; rd = flat(E[1:])
                if base in ('v_add_co_u32', 'v_addc_co_u32'):
                    wr = E[0] + E[1]; rd = flat(E[2:])
        elif base.startswith('ds_read'):
            self.kind = 'dsr'; wr = E[0]; rd = flat(E[1:])
        elif base.startswith('ds_write'):
            self.kind = 'dsw'; rd = flat(E)
        elif base.startswith('buffer_load'):
            if re.search(r'\blds\b', mods):
                self.kind = 'dma'; rd = flat(E) + ['m0']
            else:
                self.kind = 'vld'; wr = E[0]; rd = flat(E[1:])
        elif base.startswith('buffer_store'):
            self.kind = 'vst'; rd = flat(E)
        elif base == 's_waitcnt':
            self.kind = 'wait'
        elif base == 's_nop':
            self.kind = 'nop'; self.cost = 4 * (int(ops[0], 0) + 1)
        elif base == 's_barrier':
            self.kind = 'barrier'
        elif base.startswith('s_cbranch') or base == 's_branch' or base == 's_endpgm':
            self.kind = 'branch'
            if 'vcc' in base: rd = ['vcc']
            if 'scc' in base: rd = ['scc']
        elif base.startswith('s_cmp'):
            self.kind = 'salu'; rd = flat(E); wr = ['scc']
        elif base.startswith('s_load') or base.startswith('s_memtime') or base.startswith('s_memrealtime'):
            self.kind = 'smem'; wr = E[0]; rd = flat(E[1:])
        elif base in ('s_setprio', 's_sleep'):
            self.kind = 'salu'
        elif base.startswith('s_'):
            self.kind = 'salu'; wr = E[0]; rd = flat(E[1:])
        else:
            raise ValueError('unknown instr ' + text)
        self.rd = rd; self.wr = wr
    def states(self):
        if self.kind == 'label': return 0
        if self.kind == 'nop': return self.cost // 4
        return 1

def need_states(p, c):
    n = 0
    pw = set(p.wr);
    isvalu = lambda x: x.kind in ('valu', 'trans')
    if p.kind == 'mfma':
        if c.kind == 'mfma':
            if pw & set(c.srcab): n = max(n, 12)
            if pw & set(c.srcc) and p.wr != c.srcc: n = max(n, 10)
        elif isvalu(c):
            if pw & (set(c.rd) | set(c.wr)): n = max(n, 12)
            if set(p.srcc) & set(c.wr): n = max(n, 7)
        elif c.kind in ('dsr', 'dsw', 'vld', 'vst', 'dma'):
            if pw & (set(c.rd) | set(c.wr)): n = max(n, 12)
    if isvalu(p):
        if c.kind == 'mfma' and pw & set(c.rd): n = max(n, 2)
        if p.kind == 'trans' and c.kind == 'valu' and pw & set(c.rd): n = max(n, 1)
        if c.op.startswith('v_permlane') and pw & set(c.rd): n = max(n, 2)
        if c.op in ('v_readfirstlane_b32', 'v_readlane_b32') and pw & set(c.rd): n = max(n, 1)
        sw = {r for r in pw if r[0] == 's' or r == 'vcc'}
        if sw:
            if isvalu(c) and sw & set(c.rd): n = max(n, 2)
            if c.kind in ('vld', 'vst', 'dma') and sw & set(c.rd): n = max(n, 5)
    if p.kind == 'salu' and 'm0' in pw and c.kind == 'dma': n = max(n, 1)
    if p.kind == 'vst' and ('x4' in p.op or 'x3' in p.op):
        if set(p.rd) & set(c.wr): n = max(n, 2)
    return n

def deficit(hist, c):
    d = 0; dist = 0
    for p in reversed(hist):
        if dist >= 12: break
        n = need_states(p, c)
        if n > dist: d = max(d, n - dist)
        dist += p.states()
    return d

def check_hazards(seq, name=''):
    bad = 0
    for i, c in enumerate(seq):
        if c.kind == 'label': continue
        d = deficit(seq[max(0, i - 16):i], c)
        if d:
            bad += 1
            print('HAZARD %s: short %d states before: %s' % (name, d, c.text))
    return bad

class Emitter:
    def __init__(self):
        self.seq = []
        self.ldsq = []
        self.stamp = 0
        self.merge = 3
    def raw(self, ins):
        self.seq.append(ins)
    def lgkm_need(self, ins):
        regs = set(ins.rd) | set(ins.wr)
        last = -1
        for i, (d, st) in enumerate(self.ldsq):
            if set(d.wr) & regs: last = i
        return last
    def emit(self, text, auto=True):
        ins = text if isinstance(text, Ins) else Ins(text)
        if ins.kind == 'wait':
            m = re.search(r'lgkmcnt\((\d+)\)', ins.text)
            if m:
                n = int(m.group(1))
                self.ldsq = self.ldsq[len(self.ldsq) - n:] if n else []
                if n > len(self.ldsq): pass
            self.seq.append(ins); return ins
        if auto and ins.kind != 'label':
            last = self.lgkm_need(ins)
            if last >= 0:
                while last + 1 < len(self.ldsq) and self.ldsq[last + 1][1] <= self.stamp - self.merge:
                    last += 1
                n = len(self.ldsq) - 1 - last
                n = min(n, 15)
                self.seq.append(Ins('s_waitcnt lgkmcnt(%d)' % n))
                self.ldsq = self.ldsq[len(self.ldsq) - n:] if n else []
            d = deficit(self.seq[-16:], ins)
            if d:
                self.seq.append(Ins('s_nop %d' % (d - 1)))
        self.seq.append(ins)
        if ins.kind in ('dsr', 'dsw'):
            self.ldsq.append((ins, self.stamp))
        if ins.kind == 'mfma': self.stamp += 1
        return ins
    def text(self, seq=None):
        out = []
        for i in (self.seq if seq is None else seq):
            out.append(i.text if i.kind == 'label' else '    ' + i.text)
        return '\n'.join(out)
```

```python
import sys, math, struct
from asmlib import *

OPT = dict(budget=24, nodma=0, nocompute=0, stamp=0, T=8.0, e64=0, dmacost=8, ntq=1, ntst=1, align=0, nosm=0, nomax=0, pk=1, pro=0)
for a in sys.argv[1:]:
    k, v = a.split('=')
    OPT[k] = float(v) if '.' in v else int(v)

KN = "standalone__mha_softmax__near_ridge_kernel"
def f2u(x): return struct.unpack('<I', struct.pack('<f', x))[0]

OA, OB = 0, 64
SBUF = [128, 144, 160]
NEGM = {'A': 176, 'B': 192, 'C': 208}
vL = {'A': (224, 225), 'B': (226, 227), 'C': (228, 229)}
vT0, vT1 = 230, 231
vKA0, vKA1, vVA = 232, 233, 234
vKD, vVD = 235, 236
cWC = 237
vR0, vR1 = 238, 239
cW, cR, cRC, cMLW, cMLR, cST = 240, 241, 242, 243, 244, 245
vQCR = 246
vLANE = 2
aOC, aQ, aK, aV = 0, {'A': 64, 'B': 96, 'C': 128}, 160, 192

sW = 3
sQ, sK, sV, sO = 12, 16, 20, 24
sSL = [44, 45, 46, 47, 48]
sVG = 30
sT0, sT1, sT2 = 34, 35, 28
sIT, sTHR, sWC = 36, 38, 42
sHEAD = 43
sQS = [64, 65, 66, 67, 68]
sOS = [72, 73, 74, 75, 76]
sC2 = 80
sMASK = 82
aQN = 224

def vr(b, n): return 'v[%d:%d]' % (b, b + n - 1)
def ar(b, n): return 'a[%d:%d]' % (b, b + n - 1)
def srd(b): return 's[%d:%d]' % (b, b + 3)
def oacc(t, dt):
    if t == 'A': return vr(OA + 16 * dt, 16)
    if t == 'B': return vr(OB + 16 * dt, 16)
    return ar(aOC + 16 * dt, 16)

UT = ['A', 'B', 'C', 'A', 'B', 'A', 'B', 'A', 'B']
USB = [0, 0, 0, 1, 1, 2, 2, 3, 3]

E = Emitter()
e = E.emit
rare_blocks = []

def qk_block(u, first):
    t = UT[u]; s = SBUF[u % 3]
    out = []
    for kk in range(8):
        c = vr(s, 16) if kk else ('0' if (first and u < 3) else vr(NEGM[t], 16))
        out.append('v_mfma_f32_32x32x16_bf16 %s, %s, %s, %s' % (vr(s, 16), ar(aK + 4 * kk, 4), ar(aQ[t] + 4 * kk, 4), c))
    return out

def pv_block(u, first):
    t = UT[u]; s = SBUF[u % 3]
    out = []
    for ks in range(2):
        for dt in range(4):
            c = '0' if (first and u < 3 and ks == 0) else oacc(t, dt)
            out.append('v_mfma_f32_32x32x16_bf16 %s, %s, %s, %s' % (oacc(t, dt), ar(aV + 4 * (ks * 4 + dt), 4), vr(s + 8 * ks, 4), c))
    return out

def kread(kk):
    return 'ds_read_b128 %s, v%d offset:%d' % (ar(aK + 4 * kk, 4), vKA1 if kk & 1 else vKA0, (kk >> 1) * 256)
def vread(f, ii):
    ks, dt = f >> 2, f & 3
    return 'ds_read_b64_tr_b16 %s, v%d offset:%d' % (ar(aV + 4 * f + 2 * ii, 2), vVA, (2 * ks + ii) * 8192 + dt * 256)

def max_ops(s):
    return ['v_max3_f32 v%d, v%d, v%d, v%d' % (vT0, s, s + 1, s + 2),
            'v_max3_f32 v%d, v%d, v%d, v%d' % (vT1, s + 3, s + 4, s + 5),
            'v_max3_f32 v%d, v%d, v%d, v%d' % (vT0, vT0, s + 6, s + 7),
            'v_max3_f32 v%d, v%d, v%d, v%d' % (vT1, vT1, s + 8, s + 9),
            'v_max3_f32 v%d, v%d, v%d, v%d' % (vT0, vT0, s + 10, s + 11),
            'v_max3_f32 v%d, v%d, v%d, v%d' % (vT1, vT1, s + 12, s + 13),
            'v_max3_f32 v%d, v%d, v%d, v%d' % (vT0, vT0, s + 14, s + 15),
            'v_max_f32 v%d, v%d, v%d' % (vT0, vT0, vT1)]

def softmax_stream(u, init, tagname):
    t = UT[u]; s = SBUF[u % 3]; l0, l1 = vL[t]
    it = []
    if OPT['nosm']:
        return [('v_cvt_pk_bf16_f32 v%d, v%d, v%d' % (s, s, s + 1), 'h0'), ('v_cvt_pk_bf16_f32 v%d, v%d, v%d' % (s + 8, s + 8, s + 9), 'h1')]
    if init:
        it += [(x, None) for x in max_ops(s)]
        it += [('v_mov_b32 v%d, v%d' % (vT1, vT0), None),
               ('v_permlane32_swap_b32 v%d, v%d' % (vT0, vT1), None),
               ('v_max_f32 v%d, v%d, v%d' % (vT0, vT0, vT1), None)]
        n = NEGM[t]
        it += [('v_sub_f32 v%d, 0, v%d' % (n + i, vT0), None) for i in range(16)]
        it += [('v_sub_f32 v%d, v%d, v%d' % (s + i, s + i, vT0), None) for i in range(16)]
    elif not OPT['nomax']:
        it += [(x, None) for x in max_ops(s)]
        it += [('v_cmp_lt_f32 vcc, s%d, v%d' % (sTHR, vT0), 'brk')]
        it += [('s_cbranch_vccnz L_rare_%s' % tagname, None), ('L_back_%s:' % tagname, None)]
        rare_blocks.append((tagname, u))
    def tail(j):
        a, b = s + 2 * j, s + 2 * j + 1
        dst = s + j if j < 4 else s + 8 + (j - 4)
        r = []
        if init and j == 0:
            r += [('v_mov_b32 v%d, v%d' % (l0, a), None), ('v_mov_b32 v%d, v%d' % (l1, b), None)]
        else:
            r += [('v_add_f32 v%d, v%d, v%d' % (l0, l0, a), None), ('v_add_f32 v%d, v%d, v%d' % (l1, l1, b), None)]
        r += [('v_cvt_pk_bf16_f32 v%d, v%d, v%d' % (dst, a, b), 'h0' if j == 3 else ('h1' if j == 7 else None))]
        return r
    for j in range(8):
        a, b = s + 2 * j, s + 2 * j + 1
        tl = tail(j - 1) if j else []
        it += [('v_exp_f32 v%d, v%d' % (a, a), None)]
        it += tl[:1]
        it += [('v_exp_f32 v%d, v%d' % (b, b), None)]
        it += tl[1:]
    it += tail(7)
    return it

def rare_code(tag, u):
    t = UT[u]; s = SBUF[u % 3]; l0, l1 = vL[t]; n = NEGM[t]
    R = Emitter(); r = R.emit
    r('L_rare_%s:' % tag)
    r('s_nop 1')
    r('v_mov_b32 v%d, v%d' % (vT1, vT0))
    r('v_permlane32_swap_b32 v%d, v%d' % (vT0, vT1))
    r('v_max3_f32 v%d, v%d, v%d, 0' % (vT0, vT0, vT1))
    r('v_exp_f32 v%d, -v%d' % (vT1, vT0))
    for i in range(16): r('v_sub_f32 v%d, v%d, v%d' % (s + i, s + i, vT0))
    for i in range(16): r('v_sub_f32 v%d, v%d, v%d' % (n + i, n + i, vT0))
    r('v_mul_f32 v%d, v%d, v%d' % (l0, l0, vT1)); r('v_mul_f32 v%d, v%d, v%d' % (l1, l1, vT1))
    if t == 'C':
        for i in range(0, 64, 2):
            for k in range(2): r('v_accvgpr_read_b32 v%d, a%d' % (vR0 + k, aOC + i + k))
            for k in range(2): r('v_mul_f32 v%d, v%d, v%d' % (vR0 + k, vR0 + k, vT1))
            for k in range(2): r('v_accvgpr_write_b32 a%d, v%d' % (aOC + i + k, vR0 + k))
    else:
        b = OA if t == 'A' else OB
        for i in range(64): r('v_mul_f32 v%d, v%d, v%d' % (b + i, b + i, vT1))
    r('s_nop 1')
    r('s_branch L_back_%s' % tag)
    return R.seq

NT = ' nt'
def dma_items(which):
    sr = srd(sK) if which == 'K' else srd(sV)
    vo = vKD if which == 'K' else vVD
    slot = sSL[1] if which == 'K' else sSL[0]
    goff = 32768 if which == 'K' else 0
    items = []
    for g in range(2):
        pre = ['s_add_u32 m0, s%d, %d' % (slot, g * 4096), 's_add_u32 s%d, s%d, %d' % (sT0, sVG, goff + g * 4096)]
        for i in range(4):
            ld = 'buffer_load_dwordx4 v%d, %s, s%d offen offset:%d%s lds' % (vo, sr, sT0, i * 1024, NT)
            items.append((pre if i == 0 else []) + [ld])
    return items

class Sched:
    def __init__(self):
        self.stream = []
        self.ready = set()
    def push(self, items, key):
        self.stream += [(Ins(t), f, key) for (t, f) in items]
    def pop_emit(self):
        ins, f, key = self.stream.pop(0)
        e(ins)
        if f in ('h0', 'h1'): self.ready.add((key, f))
        return ins, f
    def flush_until(self, key, half):
        while (key, half) not in self.ready:
            self.pop_emit()
    def flush_unit(self, key):
        while self.stream and self.stream[0][2] == key:
            self.pop_emit()
    def fill(self, budget):
        used = 0
        while self.stream:
            ins, f, key = self.stream[0]
            if ins.kind != 'label':
                if used + ins.cost > budget: break
                if deficit(E.seq[-16:], ins): break
            self.pop_emit()
            used += ins.cost
            if f == 'brk': break
        while self.stream and self.stream[0][0].kind == 'label':
            self.pop_emit()

S = Sched()

def cost_of(t):
    i = Ins(t)
    return OPT['dmacost'] if i.kind in ('dma', 'vld') else i.cost

def run_blocks(blocks):
    for b in blocks:
        for g, m in enumerate(b['mf']):
            if b['kind'] == 'PV':
                S.flush_until(b['key'], 'h0' if g < 4 else 'h1')
            if not OPT['nocompute']: e(m)
            used = 0
            for t in b['fixed'].get(g, []):
                e(t); used += cost_of(t)
            if g == 7 and b.get('after'): b['after']()
            S.fill(max(0, OPT['budget'] - used))

def st_flush():
    if not OPT['stamp']: return
    e('s_waitcnt lgkmcnt(0)')
    for r in (50, 52):
        e('s_mov_b32 m0, s54'); e('s_add_u32 s54, s54, 1'); e('v_writelane_b32 v255, s%d, m0' % r)
def st_a(rt=0):
    if OPT['stamp']: e('%s s[50:51]' % ('s_memrealtime' if rt else 's_memtime'))
def st_b(rt=0):
    if OPT['stamp']: e('%s s[52:53]' % ('s_memrealtime' if rt else 's_memtime'))

def body(j, first, name, last=False):
    blocks = []
    def blk(kind, u, jj):
        f = first and jj == j
        d = dict(kind=kind, u=u, key=(jj, u), mf=(qk_block(u, f) if kind == 'QK' else pv_block(u, f)), fixed={})
        if kind == 'QK':
            d['after'] = (lambda u=u, jj=jj, f=f: S.push(softmax_stream(u, f and u < 3, ('%s_%d' % (name, u)) if u < 8 else None), (jj, u))) if u < 8 else None
        blocks.append(d); return d
    B = {}
    order = []
    if not first: order.append(('PV', 7, j - 1))
    order.append(('QK', 0, j))
    if not first: order.append(('PV', 8, j - 1))
    for u in range(1, 9):
        order.append(('QK', u, j))
        if u < 8: order.append(('PV', u - 1, j))
    for (k, u, jj) in order:
        B[(k, u, jj - j)] = blk(k, u, jj)
    def add(bk, g, t):
        B[bk]['fixed'].setdefault(g, []).append(t)
    kx = lambda c: ['v_xor_b32 v%d, %d, v%d' % (vKA0, c, vKA0), 'v_xor_b32 v%d, %d, v%d' % (vKA1, c, vKA1)]
    vx = lambda c: ['v_xor_b32 v%d, %d, v%d' % (vVA, c, vVA)]
    XC = [2048, 6144, 2048]
    if not first:
        S.push(softmax_stream(8, False, '%s_8p' % name), (j - 1, 8))
    vupd = ['s_sub_u32 s%d, s%d, s%d' % (sT1, sSL[3], sSL[1]), 's_add_u32 s%d, s%d, s%d' % (sT1, sT1, sWC), 'v_add_u32 v%d, s%d, v%d' % (vVA, sT1, vVA)]
    if first:
        for kk in range(8): e(kread(kk))
        for t in kx(XC[0]): e(t)
        for t in vupd: e(t)
        for f in range(8):
            add(('QK', 0, 0), f, vread(f, 0)); add(('QK', 0, 0), f, vread(f, 1))
        for t in vx(XC[0]): add(('QK', 1, 0), 0, t)
    else:
        for kk in range(8): add(('PV', 7, -1), kk // 2 if kk < 4 else kk - 2, kread(kk))
        for t in kx(XC[0]): add(('PV', 7, -1), 6, t)
        for t in vupd: add(('PV', 7, -1), 7, t)
    for i, pvu in ((1, 1), (2, 3), (3, 5)):
        for kk in range(8): add(('PV', pvu, 0), kk, kread(kk))
        nb = ('QK', pvu + 2, 0)
        if i < 3:
            for t in kx(XC[i]): add(nb, 0, t)
        else:
            add(nb, 0, 's_sub_u32 s%d, s%d, s%d' % (sT1, sSL[4], sSL[2])); add(nb, 0, 's_add_u32 s%d, s%d, s%d' % (sT1, sT1, sWC))
            add(nb, 1, 'v_add_u32 v%d, s%d, v%d' % (vKA0, sT1, vKA0)); add(nb, 1, 'v_add_u32 v%d, s%d, v%d' % (vKA1, sT1, vKA1))
    vsets = [(1, ('PV', 2, 0), ('QK', 4, 0)), (2, ('PV', 4, 0), ('QK', 6, 0)), (3, ('PV', 6, 0), ('QK', 8, 0))]
    if not first: vsets.insert(0, (0, ('PV', 8, -1), ('QK', 1, 0)))
    for i, pb, qb in vsets:
        span = 12
        for r in range(16):
            f, ii = r >> 1, r & 1
            g = max(f, (r * span) // 16)
            add(pb if g < 8 else qb, g % 8, vread(f, ii))
        if i < 3:
            for t in vx(XC[i]): add(qb, 5, t)
    QK = lambda u, gs: [(('QK', u, 0), g) for g in gs]
    PV = lambda u, gs: [(('PV', u, 0), g) for g in gs]
    dv, dk = ([], []) if OPT['nodma'] else (dma_items('V'), dma_items('K'))
    if first:
        dm = dv + dk
        sites = QK(1, range(8)) + PV(0, range(8))
    elif last:
        pre = ['s_mov_b32 s%d, s%d' % (sOS[k], sQS[k]) for k in range(5)] + ['s_add_u32 s%d, s%d, 73728' % (sQS[k], sQS[k]) for k in range(5)]
        for n, t in enumerate(pre): add(('PV', 7, -1), n // 2, t)
        dm = [[qld_text('C', n, vr(vQCR + 4 * n, 4))] for n in range(2)] + dv + [[qld_text('A', n, ar(aQN + 4 * n, 4))] for n in range(8)]
        dm += [[qld_text('B', n, ar(aQ['C'] + 4 * n, 4))] for n in range(8)] + dk
        sites = QK(0, range(8)) + QK(1, (6, 7)) + PV(0, (0, 2, 4, 6)) + QK(2, (0, 2, 4, 6))
        if OPT['nodma']: sites = sites[8:]
        sites += QK(3, (0, 2, 4, 6)) + QK(4, (4, 6)) + PV(3, (1, 5)) + QK(5, (0, 2, 4, 6)) + QK(6, (4, 6)) + PV(5, (1, 5))
    else:
        dm = dv + dk
        sites = QK(0, range(8)) + PV(0, (0, 2, 4, 6)) + QK(2, (0, 2, 4, 6))
    assert len(sites) >= len(dm)
    for it, (bk, g) in zip(dm, sites):
        for t in it: add(bk, g, t)
    rot = ['s_mov_b32 s%d, s%d' % (sT1, sSL[0]), 's_mov_b32 s%d, s%d' % (sT2, sSL[1]),
           's_mov_b32 s%d, s%d' % (sSL[0], sSL[2]), 's_mov_b32 s%d, s%d' % (sSL[1], sSL[3]), 's_mov_b32 s%d, s%d' % (sSL[2], sSL[4]),
           's_mov_b32 s%d, s%d' % (sSL[3], sT1), 's_mov_b32 s%d, s%d' % (sSL[4], sT2),
           's_add_u32 s%d, s%d, 32768' % (sVG, sVG)]
    for n, t in enumerate(rot): add(('QK', 7, 0), 3 + n // 2, t)
    if not last:
        add(('QK', 8, 0), 6, 's_add_u32 s%d, s%d, 1' % (sIT, sIT))
        add(('QK', 8, 0), 7, 's_cmp_lt_u32 s%d, 7' % sIT)
    run_blocks(blocks)
    S.flush_unit((j, 7))
    assert not S.stream
    nov = OPT['nodma'] or last
    if OPT['stamp']:
        st_flush(); e('s_cmp_lt_u32 s%d, 7' % sIT); st_a()
        if not nov: e('s_waitcnt vmcnt(8)')
        e('s_barrier'); st_b()
        return
    e('s_waitcnt vmcnt(8) lgkmcnt(0)' if not nov else 's_waitcnt lgkmcnt(0)')
    e('s_barrier')

def qld_text(t, n, dst):
    so = {'A': sQS[n >> 2], 'B': sQS[2 + (n >> 2)], 'C': sQS[4]}[t]
    return 'buffer_load_dwordx4 %s, v%d, %s, s%d offen offset:%d%s' % (dst, cST, srd(sQ), so, (n & 3) * 1024, ' nt' if OPT['ntq'] else '')

W0 = [210, 211, 212, 213]; W1 = [214, 215, 216, 217]; RC = [218, 219, 220, 221]; MLW, MLR = 222, 223
WC = [246, 247, 248, 249]; QCW = [228, 229]
RA = [RC[0], RC[1]]; RB = [RC[2], RC[3]]
OWN = SBUF[0]
PX = [OWN, SBUF[1], SBUF[2], NEGM['A']]
ML = NEGM['B']

def rowsum_ops(t, dst):
    l0, l1 = vL[t]
    return ['v_add_f32 v%d, v%d, v%d' % (l0, l0, l1), 'v_mov_b32 v%d, v%d' % (l1, l0),
            'v_permlane32_swap_b32 v%d, v%d' % (l0, l1), 'v_add_f32 v%d, v%d, v%d' % (dst, l0, l1)]

def w_addr():
    pre = ['v_add_u32 v%d, s%d, v%d' % (W0[0], sSL[0], cW), 'v_add_u32 v%d, s%d, v%d' % (W1[0], sSL[1], cW)]
    for k in range(1, 4): pre += ['v_xor_b32 v%d, %d, v%d' % (W0[k], 32 * k, W0[0]), 'v_xor_b32 v%d, %d, v%d' % (W1[k], 32 * k, W1[0])]
    return pre
def r_addr():
    return ['v_add_u32 v%d, s%d, v%d' % (RA[0], sSL[0], cR), 'v_add_u32 v%d, s%d, v%d' % (RB[0], sSL[1], cR),
            'v_xor_b32 v%d, 64, v%d' % (RA[1], RA[0]), 'v_xor_b32 v%d, 64, v%d' % (RB[1], RB[0])]
def qcw_addr():
    return ['s_lshl_b32 s%d, s%d, 11' % (sT0, sW), 's_add_u32 s%d, s%d, s%d' % (sT0, sT0, sSL[1]),
            'v_add_u32 v%d, s%d, v%d' % (QCW[0], sT0, cR), 'v_xor_b32 v%d, 64, v%d' % (QCW[1], QCW[0])]
def wc_addr():
    return ['v_add_u32 v%d, s%d, v%d' % (WC[0], sSL[1], cWC)] + ['v_xor_b32 v%d, %d, v%d' % (WC[k], 32 * k, WC[0]) for k in range(1, 4)]
def qfrag_reads(W, dst):
    return ['ds_read_b128 %s, v%d offset:%d' % (ar(dst + 4 * kk, 4), W[kk & 3], 128 * (kk >> 2)) for kk in range(8)]

def qscale_group(src_is_a, src, T, waddr, woff):
    g = []
    x = src
    if src_is_a:
        g += ['v_accvgpr_read_b32 v%d, a%d' % (T + 8 + r, src + r) for r in range(4)]
        x = T + 8
    for r in range(4):
        g += ['v_lshlrev_b32 v%d, 16, v%d' % (T + 2 * r, x + r), 'v_and_b32 v%d, 0xffff0000, v%d' % (T + 2 * r + 1, x + r)]
    for r in range(4):
        if OPT['pk']: g.append('v_pk_mul_f32 %s, %s, s[%d:%d]' % (vr(T + 2 * r, 2), vr(T + 2 * r, 2), sC2, sC2 + 1))
        else: g += ['v_mul_f32 v%d, s%d, v%d' % (T + 2 * r + h, sC2, T + 2 * r + h) for h in range(2)]
    g += ['v_cvt_pk_bf16_f32 v%d, v%d, v%d' % (x + r, T + 2 * r, T + 2 * r + 1) for r in range(4)]
    g.append('ds_write_b128 v%d, %s offset:%d' % (waddr, vr(x, 4), woff))
    return g
def qscale_tile(src_is_a, src, R):
    return [qscale_group(src_is_a, src + 4 * n, SBUF[1] + 16 * (n & 1), R[n & 1], 1024 * n) for n in range(8)]
def qscale_cq(T):
    return [qscale_group(False, vQCR + 4 * n, T, QCW[n], 1024 * n) for n in range(2)]

def tail(j):
    S.push(softmax_stream(8, False, 'tail_8'), (j, 8))
    pre = w_addr()
    pre2 = ['v_add_u32 v%d, s%d, v%d' % (RC[0], sSL[0], cRC), 'v_add_u32 v%d, s%d, v%d' % (RC[1], sSL[1], cRC),
            'v_cndmask_b32 v%d, v%d, v%d, s[%d:%d]' % (RC[0], RC[0], RC[1], sMASK, sMASK + 1),
            'v_xor_b32 v%d, 16, v%d' % (RC[1], RC[0]), 'v_xor_b32 v%d, 64, v%d' % (RC[2], RC[0]), 'v_xor_b32 v%d, 0x50, v%d' % (RC[3], RC[0]),
            'v_add_u32 v%d, s%d, v%d' % (MLW, sSL[0], cMLW), 'v_add_u32 v%d, s%d, v%d' % (MLR, sSL[0], cMLR)]
    cw = ['ds_write_b128 v%d, %s offset:%d' % ((W1 if dt >> 1 else W0)[g], ar(aOC + 16 * dt + 4 * g, 4), 128 * (dt & 1)) for dt in range(4) for g in range(4)]
    ownr = ['ds_read_b128 %s, v%d offset:%d' % (vr(OWN + 4 * k, 4), RC[k], 1024 * (k >> 1)) for k in range(4)]
    rs = rowsum_ops('C', NEGM['C'] + 1)
    qc = qscale_cq(NEGM['A'])
    blocks = [dict(kind='PV', u=7, key=(j, 7), mf=pv_block(7, False), fixed={}),
              dict(kind='PV', u=8, key=(j, 8), mf=pv_block(8, False), fixed={})]
    f7, f8 = blocks[0]['fixed'], blocks[1]['fixed']
    f7[0] = pre[:5]; f7[1] = pre[5:] + cw[0:1]
    for g in range(2, 8): f7[g] = [cw[g - 1]]
    for g in range(8): f8[g] = [cw[7 + g], pre2[g]]
    f8[4] += rs[:2]; f8[5] += rs[2:]; f8[6] += qcw_addr()
    f8[7] += ['s_waitcnt vmcnt(%d)' % (16 if OPT['nodma'] else 32)] + qc[0][:-1]
    old = OPT['budget']; OPT['budget'] = 28
    run_blocks(blocks)
    OPT['budget'] = old
    e(cw[15])
    for t in ownr: e(t)
    e('ds_write_b64 v%d, %s' % (MLW, vr(NEGM['C'], 2)))
    e(qc[0][-1])
    for t in qc[1]: e(t)

def merge(*streams):
    n = max(len(s) for s in streams)
    pos = [0] * len(streams)
    for step in range(1, n + 1):
        for k, s_ in enumerate(streams):
            tgt = (len(s_) * step + n - 1) // n
            while pos[k] < tgt:
                it = s_[pos[k]]; pos[k] += 1
                for t in (it if isinstance(it, list) else [it]): e(t)
def flat(gs): return [t for g in gs for t in g]

def norm_ops(t):
    base = OA if t == 'A' else OB
    inv = vT0
    groups = []
    for dt in range(4):
        for gp in range(2):
            b = base + 16 * dt + 8 * gp
            g = []
            if OPT['pk']:
                g += ['v_pk_mul_f32 %s, %s, %s op_sel_hi:[1,0]' % (vr(b + r, 2), vr(b + r, 2), vr(inv, 2)) for r in range(0, 8, 2)]
            else:
                g += ['v_mul_f32 v%d, v%d, v%d' % (b + r, b + r, inv) for r in range(8)]
            g += ['v_cvt_pk_bf16_f32 v%d, v%d, v%d' % (b + r, b + 2 * r, b + 2 * r + 1) for r in range(4)]
            g += ['v_permlane32_swap_b32 v%d, v%d' % (b, b + 2), 'v_permlane32_swap_b32 v%d, v%d' % (b + 1, b + 3)]
            groups.append(g)
    groups[0] = rowsum_ops(t, inv) + ['v_rcp_f32 v%d, v%d' % (inv, inv)] + groups[0]
    out = []; pend = []
    for g in groups:
        out += g[:-6] + pend + g[-6:-2]; pend = g[-2:]
    return out + pend

def tile_writes(t):
    base = OA if t == 'A' else OB; W = W0 if t == 'A' else W1
    return ['ds_write_b128 v%d, %s offset:%d' % (W[2 * (dt & 1) + gp], vr(base + 16 * dt + 8 * gp, 4), 128 * (dt >> 1)) for dt in range(4) for gp in range(2)]
def tile_reads(t, R):
    base = OA if t == 'A' else OB
    return ['ds_read_b128 %s, v%d offset:%d' % (vr(base + 8 * n + 4, 4), R[n & 1], 1024 * n) for n in range(8)]
def tile_stores(t):
    base = OA if t == 'A' else OB
    so = sOS[0:2] if t == 'A' else sOS[2:4]
    st = ' nt' if OPT['ntst'] else ''
    return ['buffer_store_dwordx4 %s, v%d, %s, s%d offen offset:%d%s' % (vr(base + 8 * n + 4, 4), cST, srd(sO), so[n >> 2], 1024 * (n & 3), st) for n in range(8)]

def epilogue():
    for t in wc_addr(): e(t)
    e('s_waitcnt lgkmcnt(0)')
    e('s_barrier')
    rd = []
    for i in range(4):
        if i: rd.append('v_xor_b32 v%d, %d, v%d' % (MLR, 10240 * (i ^ (i - 1)), MLR))
        rd.append('ds_read_b128 %s, v%d' % (vr(ML + 4 * i, 4), MLR))
    for i in range(1, 4):
        for k in range(4):
            rd.append(['v_xor_b32 v%d, %d, v%d' % (RC[k], 8192 * (i ^ (i - 1)), RC[k]),
                       'ds_read_b128 %s, v%d offset:%d' % (vr(PX[i] + 4 * k, 4), RC[k], 1024 * (k >> 1))])
    rd += qfrag_reads(WC, aK)
    na = norm_ops('A')
    h = (len(na) * 2) // 3
    merge(rd, na[:h])
    for t in na[h:]: e(t)
    for t in r_addr(): e(t)
    e('s_waitcnt lgkmcnt(0)' if OPT['nodma'] else 's_waitcnt vmcnt(24) lgkmcnt(0)')
    e('s_barrier')
    merge(tile_writes('A'), norm_ops('B'))
    cf = []
    t0 = [vR0, vR1]
    for n in range(2):
        m = lambda i: ML + 4 * i + 2 * n
        l = lambda i: ML + 4 * i + 2 * n + 1
        x = []
        x += ['v_min_f32 v%d, v%d, v%d' % (t0[n], m(0), m(1)), 'v_min3_f32 v%d, v%d, v%d, v%d' % (t0[n], t0[n], m(2), m(3))]
        x += ['v_sub_f32 v%d, v%d, v%d' % (m(i), t0[n], m(i)) for i in range(4)]
        x += ['v_exp_f32 v%d, v%d' % (m(i), m(i)) for i in range(4)]
        x += ['v_mul_f32 v%d, v%d, v%d' % (t0[n], m(0), l(0))]
        x += ['v_fmac_f32 v%d, v%d, v%d' % (t0[n], m(i), l(i)) for i in range(1, 4)]
        x += ['v_rcp_f32 v%d, v%d' % (t0[n], t0[n])]
        x += ['v_mul_f32 v%d, v%d, v%d' % (m(i), m(i), t0[n]) for i in range(4)]
        cf.append(x)
    cv = [t for pair in zip(*cf) for t in pair]
    for i in range(4):
        for n in range(2):
            for k in range(8):
                r = 8 * n + k
                g = ML + 4 * i + 2 * n
                cv.append(('v_mul_f32 v%d, v%d, v%d' % (OWN + r, OWN + r, g)) if i == 0 else ('v_fmac_f32 v%d, v%d, v%d' % (OWN + r, PX[i] + r, g)))
    for n in range(2):
        cv += ['v_cvt_pk_bf16_f32 v%d, v%d, v%d' % (OWN + 8 * n + r, OWN + 8 * n + 2 * r, OWN + 8 * n + 2 * r + 1) for r in range(4)]
    st = ' nt' if OPT['ntst'] else ''
    cs = ['buffer_store_dwordx4 %s, v%d, %s, s%d offen offset:%d%s' % (vr(OWN + 8 * n, 4), cST, srd(sO), sOS[4], 1024 * n, st) for n in range(2)]
    h = len(cv) // 2
    merge(tile_reads('A', RA) + tile_writes('B'), cv[:h])
    merge(tile_reads('B', RB) + tile_stores('A'), cv[h:])
    for t in cs: e(t)
    return tile_stores('B')

def prologue():
    e('s_cmp_ge_u32 s2, 256'); e('s_cbranch_scc1 L_end')
    if OPT['stamp']:
        st_a(); st_b(1); e('s_mov_b32 s54, 0'); e('v_mov_b32 v255, 0'); e('s_load_dwordx2 s[60:61], s[0:1], 40')
    e('s_load_dwordx4 s[4:7], s[0:1], 0')
    e('s_load_dwordx4 s[8:11], s[0:1], 16')
    L = vLANE
    e('v_lshrrev_b32 v1, 6, v0')
    e('v_and_b32 v%d, 63, v0' % L)
    e('v_readfirstlane_b32 s%d, v1' % sW)
    e('v_lshlrev_b32 v%d, 4, v%d' % (cST, L))
    e('s_mul_i32 s28, s2, 147456')
    e('s_lshl_b32 s29, s2, 19')
    e('s_lshl_b32 s%d, s%d, 14' % (sQS[0], sW))
    for k in range(1, 4): e('s_add_u32 s%d, s%d, %d' % (sQS[k], sQS[0], 4096 * k))
    e('s_lshl_b32 s%d, s%d, 11' % (sQS[4], sW)); e('s_add_u32 s%d, s%d, 65536' % (sQS[4], sQS[4]))
    e('v_lshrrev_b32 v3, 4, v%d' % L); e('v_lshlrev_b32 v3, 6, v3')
    e('v_bfe_u32 v7, v%d, 2, 2' % L); e('v_lshl_add_u32 v3, v7, 8, v3')
    e('v_lshl_add_u32 v3, v1, 13, v3')
    e('v_and_b32 v7, 3, v%d' % L); e('v_lshl_add_u32 v%d, v7, 4, v3' % vVD)
    e('v_xor_b32 v7, v7, v1'); e('v_lshl_add_u32 v%d, v7, 4, v3' % vKD)
    e('s_lshl_b32 s%d, s%d, 13' % (sT0, sW))
    for n, sl in enumerate((3, 4, 0, 1, 2)):
        e('s_add_u32 s%d, s%d, %d' % (sSL[n], sT0, sl * 32768))
    e('s_waitcnt lgkmcnt(0)')
    st_flush()
    def mk_srd(d, p, off, size):
        e('s_add_u32 s%d, s%d, s%d' % (d, p, off)); e('s_addc_u32 s%d, s%d, 0' % (d + 1, p + 1)); e('s_mov_b32 s%d, %d' % (d + 2, size)); e('s_mov_b32 s%d, 0x20000' % (d + 3))
    mk_srd(sQ, 4, 28, 147456)
    QV = {'A': 16, 'B': 48}
    for t in 'AB':
        for n in range(8): e(qld_text(t, n, vr(QV[t] + 4 * n, 4)))
    for n in range(2): e(qld_text('C', n, vr(vQCR + 4 * n, 4)))
    mk_srd(sK, 6, 29, 524288); mk_srd(sV, 8, 29, 524288); mk_srd(sO, 10, 28, 147456)
    def dma_tile(sr, vo, slot, goff):
        out = []
        for g in range(2):
            for i in range(4):
                pre = ['s_add_u32 m0, s%d, %d' % (slot, g * 4096), 's_mov_b32 s%d, %d' % (sT1, goff + g * 4096)] if i == 0 else []
                out.append(pre + ['buffer_load_dwordx4 v%d, %s, s%d offen offset:%d%s lds' % (vo, srd(sr), sT1, i * 1024, NT)])
        return out
    k0 = dma_tile(sK, vKD, sSL[2], 0); v0 = dma_tile(sV, vVD, sSL[3], 0); k1 = dma_tile(sK, vKD, sSL[4], 32768)
    extra = k0 + v0 + k1
    issued = 18
    npre = {0: 8, 1: 16, 2: 24}[OPT['pro']]
    for g in extra[:npre]:
        for t in g: e(t)
    issued += npre
    extra = extra[npre:]
    e('v_and_b32 v4, 31, v%d' % L); e('v_lshrrev_b32 v6, 5, v%d' % L)
    e('v_lshrrev_b32 v7, 3, v4'); e('v_lshlrev_b32 v8, 13, v7')
    e('v_xor_b32 v7, v7, v6'); e('v_lshl_add_u32 v8, v7, 4, v8')
    e('v_bfe_u32 v7, v4, 2, 1'); e('v_lshl_add_u32 v8, v7, 10, v8')
    e('v_and_b32 v7, 3, v4'); e('v_lshl_add_u32 v8, v7, 6, v8')
    e('v_lshl_add_u32 v%d, v1, 11, v8' % vKA0)
    e('v_xor_b32 v%d, 32, v%d' % (vKA1, vKA0))
    e('v_lshlrev_b32 v8, 10, v6')
    e('v_bfe_u32 v7, v%d, 2, 2' % L); e('v_lshl_add_u32 v8, v7, 6, v8')
    e('v_bfe_u32 v7, v%d, 4, 1' % L); e('v_lshl_add_u32 v8, v7, 5, v8')
    e('v_and_b32 v7, 3, v%d' % L); e('v_lshl_add_u32 v8, v7, 3, v8')
    e('v_xor_b32 v7, 3, v1'); e('v_lshl_add_u32 v8, v7, 11, v8')
    e('v_add_u32 v%d, %d, v8' % (vVA, 4 * 32768))
    e('s_xor_b32 s%d, s%d, 3' % (sT0, sW)); e('s_sub_u32 s%d, s%d, s%d' % (sWC, sW, sT0)); e('s_lshl_b32 s%d, s%d, 11' % (sWC, sWC))
    e('s_mov_b32 s%d, 0' % sHEAD)
    e('s_mov_b32 s%d, 0x%x' % (sTHR, f2u(OPT['T'])))
    cc = f2u(math.log2(math.e) / math.sqrt(128.0))
    e('s_mov_b32 s%d, 0x%x' % (sC2, cc)); e('s_mov_b32 s%d, 0x%x' % (sC2 + 1, cc))
    e('s_mov_b32 s%d, 0xff00ff00' % sMASK); e('s_mov_b32 s%d, 0xff00ff00' % (sMASK + 1))
    e('v_and_b32 v7, 7, v4'); e('v_xor_b32 v7, v7, v6'); e('v_lshlrev_b32 v7, 4, v7'); e('v_lshl_add_u32 v%d, v4, 8, v7' % cW)
    e('v_lshrrev_b32 v7, 3, v4'); e('v_sub_u32 v7, v7, v1'); e('v_lshl_add_u32 v%d, v7, 13, v%d' % (cWC, cW))
    e('v_lshrrev_b32 v8, 4, v%d' % L)
    e('v_and_b32 v7, 15, v%d' % L); e('v_xor_b32 v7, v7, v8'); e('v_lshlrev_b32 v7, 4, v7'); e('v_lshl_add_u32 v%d, v8, 8, v7' % cR)
    e('v_and_b32 v7, 7, v%d' % L); e('v_lshlrev_b32 v7, 1, v7'); e('v_xor_b32 v7, v7, v8'); e('v_lshlrev_b32 v7, 4, v7')
    e('v_lshl_add_u32 v7, v8, 8, v7'); e('v_lshl_add_u32 v%d, v1, 11, v7' % cRC)
    e('v_lshrrev_b32 v7, 3, v4'); e('v_lshlrev_b32 v7, 6, v7'); e('v_and_b32 v9, 3, v4'); e('v_lshl_add_u32 v7, v9, 4, v7')
    e('v_bfe_u32 v9, v4, 2, 1'); e('v_lshl_add_u32 v7, v9, 3, v7'); e('v_lshl_add_u32 v%d, v1, 11, v7' % cMLW)
    e('v_lshlrev_b32 v7, 4, v8'); e('v_lshl_add_u32 v7, v1, 6, v7'); e('v_lshl_add_u32 v%d, v1, 11, v7' % cMLR)
    e('s_mov_b32 s%d, 32768' % sVG)
    for t in w_addr() + r_addr() + qcw_addr(): e(t)
    groups = qscale_tile(False, QV['A'], RA) + qscale_tile(False, QV['B'], RB) + qscale_cq(SBUF[1])
    for qi, g in enumerate(groups):
        if qi % 2 == 0:
            e('s_waitcnt vmcnt(%d)' % (issued - (qi + 2)))
        if qi == 16:
            for t in qfrag_reads(W1, aQ['B']): e(t)
        for x in g: e(x)
        if qi == 7:
            for t in qfrag_reads(W0, aQ['A']): e(t)
        if extra:
            for x in extra.pop(0): e(x)
            issued += 1
    assert not extra
    for t in wc_addr(): e(t)
    e('s_waitcnt lgkmcnt(0)')
    e('s_barrier')
    for t in qfrag_reads(WC, aQ['C']): e(t)
    st_a()
    e('s_waitcnt vmcnt(8) lgkmcnt(0)')
    e('s_barrier')
    st_b()

prologue()
e('L_head:')
e('s_mov_b32 s%d, 0' % sIT)
n0 = len(E.seq)
body(0, True, 'f')
if OPT['align']: e('.p2align %d' % OPT['align'])
e('L_loop:')
n1 = len(E.seq)
pre_seq, pre_rare = list(E.seq), list(rare_blocks)
hist = pre_seq
import io, contextlib
for attempt in range(4):
    E.seq = list(hist); rare_blocks[:] = pre_rare
    m1 = len(E.seq)
    body(1, False, 'l')
    bd = E.seq[m1:]
    br = [Ins('s_cbranch_scc1 L_loop')]
    with contextlib.redirect_stdout(io.StringIO()):
        ok = check_hazards(pre_seq[-40:] + bd[:60]) == 0 and check_hazards(bd[-40:] + br + bd[:60]) == 0
    if ok: break
    hist = bd[-3:] if attempt else bd + br
    if attempt >= 1: hist = [i for i in bd if i.kind == 'mfma'][-8:] + bd[-2:]
assert ok
E.seq = pre_seq + bd + br
n2 = n1 + len(bd)
sv_seq = E.seq
body(2, False, 'z', last=True)
tail(2)
st_flush(); st_a()
stB = epilogue()
e('s_add_u32 s%d, s%d, 1' % (sHEAD, sHEAD))
e('s_cmp_ge_u32 s%d, 2' % sHEAD)
e('s_cbranch_scc0 L_next')
sv_ldsq = list(E.ldsq)
for t in stB: e(t)
st_b(); st_flush()
e('s_branch L_fin')
e('L_next:')
E.ldsq = sv_ldsq
st_b(); st_flush(); st_a()
nk = 0 if OPT['nodma'] else 8
e('s_waitcnt vmcnt(%d)' % (18 + nk))
merge(stB, flat(qscale_tile(True, aQN, RA)))
e('s_waitcnt vmcnt(%d)' % (18 + nk))
merge(qfrag_reads(W0, aQ['A']), flat(qscale_tile(True, aQ['C'], RB)))
merge(qfrag_reads(W1, aQ['B']), ['v_accvgpr_mov_b32 a%d, a%d' % (aQ['C'] + r, aK + r) for r in range(32)])
e('s_waitcnt lgkmcnt(0)')
st_b()
e('s_branch L_head')
e('L_fin:')
if OPT['stamp']:
    e('s_waitcnt vmcnt(0)'); st_a(); st_b(1); st_flush()
    e('s_lshl_b32 s28, s2, 2'); e('s_add_u32 s28, s28, s%d' % sW); e('s_lshl_b32 s28, s28, 8')
    e('s_add_u32 s60, s60, s28'); e('s_addc_u32 s61, s61, 0'); e('s_mov_b32 s62, 256'); e('s_mov_b32 s63, 0x20000')
    e('v_lshrrev_b32 v254, 2, v%d' % cST)
    e('buffer_store_dword v255, v254, s[60:63], 0 offen')
e('L_end:')
e('s_endpgm')
assert check_hazards(E.seq, 'main') == 0
rare = []
for tag, u in rare_blocks: rare += rare_code(tag, u)

hdr = open('standalone__mha_softmax__near_ridge.s.ref').read().split('; Override launch')[0]
print(hdr.rstrip())
print('; @launch grid=(256,1,1) block=(256,1,1) lds=163840')
print('.amdgcn_target "amdgcn-amd-amdhsa--gfx950"\n.text\n.globl %s\n.p2align 8\n.type %s,@function\n%s:' % (KN, KN, KN))
print(E.text())
print(E.text(rare))
print('''.section .rodata,"a"
.p2align 6
.amdhsa_kernel %s
  .amdhsa_next_free_vgpr 512
  .amdhsa_next_free_sgpr 102
  .amdhsa_accum_offset 256
  .amdhsa_group_segment_fixed_size 0
  .amdhsa_kernarg_size 48
  .amdhsa_user_sgpr_count 2
  .amdhsa_user_sgpr_kernarg_segment_ptr 1
  .amdhsa_system_sgpr_workgroup_id_x 1
.end_amdhsa_kernel''' % KN)
loop = sv_seq[n1:n2]
from collections import Counter
sys.stderr.write('loop body: %d instrs %s\n' % (len(loop), dict(Counter(i.kind for i in loop))))
```
